```python
import torch

def _softmax(x, axis=-1):
    return torch.softmax(x, dim=axis)
def _gelu(x):
    return torch.nn.functional.gelu(x, approximate="tanh")
def _silu(x):
    return torch.nn.functional.silu(x)
def _sigmoid(x):
    return torch.sigmoid(x)
def _layernorm(x, axis=-1, eps=1e-5):
    m = x.mean(dim=axis, keepdim=True)
    v = x.var(dim=axis, keepdim=True, unbiased=False)
    return (x - m) / torch.sqrt(v + eps)
def _scatter_add(tgt, idx, src, axis=0):
    return tgt.clone().index_add_(axis, idx, src)
def _segment_sum(src, seg, n):
    out = torch.zeros((n,) + src.shape[1:], dtype=src.dtype)
    return out.index_add_(0, seg, src)
def _pad(x, pw):
    flat = tuple(v for pair in reversed(pw) for v in pair)
    return torch.nn.functional.pad(x, flat)

kernel_name = 'concat_heads__mha_block__sliding_local_dilated__prompt'

def setup_inputs():

    _w = (lambda a: (lambda t: t.to(torch.bfloat16) if t.is_floating_point() else t)(torch.as_tensor(a)))
    def _A_setup():
        B, S, D, H = 1, 2048, 512, 32
        return {
            "x": _w((lambda *s: torch.randn(*s, dtype=torch.bfloat16) * 0.2)(B, S, D)),
            "wqkv": _w((lambda *s: torch.randn(*s, dtype=torch.bfloat16) * 0.4)(D, 3 * D)),
            "wo": _w((lambda *s: torch.randn(*s, dtype=torch.bfloat16) * 0.1)(D, D)),
        }
    _A_in = _A_setup()

    def _B_setup():
        B, S, D = 1, 2048, 512
        return {
            "x": _w((lambda *s: torch.randn(*s, dtype=torch.bfloat16) * 0.4)(B, S, D)),
            "wqkv": _w((lambda *s: torch.randn(*s, dtype=torch.bfloat16) * 0.4)(D, 3 * D)),
            "wo": _w((lambda *s: torch.randn(*s, dtype=torch.bfloat16) * 0.05)(D, D)),
        }
    _B_in = _B_setup()

    return {
        "A_x": _A_in["x"],
        "A_wqkv": _A_in["wqkv"],
        "A_wo": _A_in["wo"],
        "B_x": _B_in["x"],
        "B_wqkv": _B_in["wqkv"],
        "B_wo": _B_in["wo"],
    }

def reference(A_x, A_wqkv, A_wo, B_x, B_wqkv, B_wo):
    def _A_ref(x, wqkv, wo):
        B, S, D = x.shape
        H = 32
        Dh = D // H
        qkv = (lambda x, *d: x.permute(*d))((x @ wqkv).reshape(B, S, 3, H, Dh), 2, 0, 3, 1, 4)
        q, k, v = qkv[0], qkv[1], qkv[2]
        scores = torch.einsum("bhqd,bhkd->bhqk", q, k) * (Dh ** -0.5)
        p = _softmax(scores, axis=-1)
        o = torch.einsum("bhqk,bhkd->bhqd", p, v)
        return (lambda x, *d: x.permute(*d))(o, 0, 2, 1, 3).reshape(B, S, D) @ wo

    def _B_ref(x, wqkv, wo):
        B, S, D = x.shape
        H = 32; Dh = D // H
        W, dil = 8, 2
        qkv = (lambda x, *d: x.permute(*d))((x @ wqkv).reshape(B, S, 3, H, Dh), 2, 0, 3, 1, 4)
        q, k, v = qkv[0], qkv[1], qkv[2]
        scale = Dh ** -0.5
        pos = torch.arange(S)
        off = torch.arange(W) * dil
        idx = pos[:, None] - off[None, :]
        mask = idx >= 0
        idx_c = torch.where(mask, idx, 0).reshape(-1)
        kg = k[:, :, idx_c, :].reshape(B, H, S, W, Dh)
        vg = v[:, :, idx_c, :].reshape(B, H, S, W, Dh)
        logits = torch.einsum("bhsd,bhswd->bhsw", q, kg) * scale
        logits = torch.where(mask[None, None, :, :], logits, -1e9)
        attn = _softmax(logits, axis=-1)
        o = torch.einsum("bhsw,bhswd->bhsd", attn, vg)
        return (lambda x, *d: x.permute(*d))(o, 0, 2, 1, 3).reshape(B, S, D) @ wo

    a = _A_ref(A_x, A_wqkv, A_wo)
    b = _B_ref(B_x, B_wqkv, B_wo)
    return torch.concatenate([a, b], axis=-1)
```

```python
class Asm:
    def __init__(self):
        self.lines = []
    def __call__(self, s=""):
        for ln in s.split("\n"):
            self.lines.append(ln)
    def c(self, s):
        self.lines.append("    ; " + s)
    def i(self, s):
        for ln in s.strip("\n").split("\n"):
            ln = ln.strip()
            if ln.endswith(":") or ln == "":
                self.lines.append(ln)
            else:
                self.lines.append("    " + ln)
    def text(self):
        return "\n".join(self.lines) + "\n"

def vr(a, n=1):
    return f"v{a}" if n == 1 else f"v[{a}:{a+n-1}]"
def sr(a, n=1):
    return f"s{a}" if n == 1 else f"s[{a}:{a+n-1}]"

WS_QA = 0x000000
WS_KA = 0x200000
WS_VA = 0x400000
WS_QB = 0x700000
WS_KB = 0x900000
WS_VB = 0xB00000
WS_OA = 0xE00000
WS_OB = 0x1000000
WS_SIZE = 0x1200000
HEAD_QK = 65536
HEAD_V = 69632
VT = 1088

def kernel_header(a, name):
    a(f".globl {name}")
    a(".p2align 8")
    a(f".type {name},@function")
    a(f"{name}:")

def kernel_desc(name, vgpr, sgpr=96, accum=None):
    if accum is None:
        accum = (vgpr + 3) // 4 * 4
    return f""".p2align 6
.amdhsa_kernel {name}
  .amdhsa_next_free_vgpr {vgpr}
  .amdhsa_next_free_sgpr {sgpr}
  .amdhsa_accum_offset {accum}
  .amdhsa_group_segment_fixed_size 0
  .amdhsa_kernarg_size 72
  .amdhsa_user_sgpr_count 2
  .amdhsa_user_sgpr_kernarg_segment_ptr 1
  .amdhsa_system_sgpr_workgroup_id_x 1
  .amdhsa_float_denorm_mode_32 3
.end_amdhsa_kernel
"""

def srd(a, d, base_lo, base_hi, size):
    a.i(f"s_mov_b32 s{d}, s{base_lo}")
    a.i(f"s_and_b32 s{d+1}, s{base_hi}, 0xffff")
    a.i(f"s_mov_b32 s{d+2}, {size:#x}")
    a.i(f"s_mov_b32 s{d+3}, 0x00020000")
```

```python
from common import *

def gen_k1(a, name="k1_qkv_kernel"):
    kernel_header(a, name)
    NST = 8
    SLOT = 40960
    a.i("""
    s_cmp_ge_u32 s2, 256
    s_cbranch_scc1 K1_DONE
    s_load_dwordx4 s[24:27], s[0:1], 0      ; A_x, A_wqkv
    s_load_dwordx4 s[28:31], s[0:1], 24     ; B_x, B_wqkv
    s_load_dwordx2 s[32:33], s[0:1], 64     ; ws
    v_lshrrev_b32 v1, 6, v0
    v_and_b32 v2, 63, v0                    ; lane
    s_and_b32 s3, s2, 7                     ; j
    v_readfirstlane_b32 s20, v1             ; wave w
    s_lshr_b32 s4, s2, 3                    ; t
    s_lshr_b32 s5, s3, 2                    ; branch
    s_and_b32 s6, s4, 7
    s_and_b32 s7, s3, 3
    s_lshl_b32 s7, s7, 2
    s_lshr_b32 s4, s4, 3
    s_add_u32 s7, s7, s4
    s_waitcnt lgkmcnt(0)
    s_cmp_eq_u32 s5, 0
    s_cselect_b32 s24, s24, s28
    s_cselect_b32 s25, s25, s29
    s_cselect_b32 s26, s26, s30
    s_cselect_b32 s27, s27, s31
    """)
    srd(a, 8, 24, 25, 0x200000)
    srd(a, 12, 26, 27, 0x180000)
    srd(a, 16, 32, 33, WS_SIZE)
    a.i("""
    s_lshl_b32 s21, s7, 7
    s_lshl_b32 s22, s20, 3
    s_add_u32 s21, s21, s22                 ; rb*128 + 8w
    v_lshrrev_b32 v4, 3, v2                 ; l>>3
    v_add_u32 v5, s21, v4
    v_lshlrev_b32 v5, 10, v5                ; *1024
    s_and_b32 s22, s20, 1
    s_lshl_b32 s22, s22, 2
    v_lshrrev_b32 v6, 4, v2                 ; l>>4
    v_add_u32 v7, s22, v6
    v_and_b32 v7, 7, v7
    v_and_b32 v8, 7, v2
    v_xor_b32 v7, v7, v8
    v_lshlrev_b32 v7, 4, v7
    v_add_u32 v3, v5, v7                    ; voff_x
    """)
    a.i("""
    s_lshl_b32 s22, s20, 3
    v_add_u32 v5, s22, v4
    s_movk_i32 s23, 3072
    v_mul_lo_u32 v5, v5, s23
    s_lshl_b32 s22, s6, 7
    v_add_u32 v5, s22, v5
    v_lshrrev_b32 v7, 2, v8                 ; (l&7)>>2
    v_and_b32 v10, 1, v6
    v_xor_b32 v7, v7, v10
    v_lshlrev_b32 v7, 6, v7
    v_add_u32 v5, v5, v7
    v_and_b32 v7, 3, v2
    v_lshlrev_b32 v7, 4, v7
    v_add_u32 v9, v5, v7                    ; voff_w
    s_lshl_b32 s20, s20, 10
    """)
    def dma_stage(st):
        slot = (st % 4) * SLOT
        for j in range(4):
            a.i(f"s_add_u32 m0, s20, {slot + j*4096}")
            a.i(f"s_mov_b32 s21, {j*32768 + st*128}")
            a.i(f"buffer_load_dwordx4 v3, s[8:11], s21 offen lds")
        for jj in range(6):
            ty = jj >> 1
            a.i(f"s_add_u32 m0, s20, {slot + 16384 + ty*8192 + (jj&1)*4096}")
            a.i(f"s_mov_b32 s21, {st*64*3072 + (jj&1)*32*3072 + ty*1024}")
            a.i(f"buffer_load_dwordx4 v9, s[12:15], s21 offen lds")
    for st in range(4):
        dma_stage(st)
    VX = 12
    VW = 16
    a.i("""
    s_lshr_b32 s22, s20, 10                 ; w
    s_and_b32 s23, s22, 1                   ; wr
    s_lshr_b32 s22, s22, 1
    v_and_b32 v4, 31, v2                    ; l&31
    v_lshrrev_b32 v5, 5, v2                 ; h
    s_lshl_b32 s21, s23, 6
    v_add_u32 v6, s21, v4
    v_lshlrev_b32 v6, 7, v6                 ; row*128
    v_lshrrev_b32 v7, 1, v4
    v_and_b32 v7, 7, v7                     ; f
    v_xor_b32 v7, v7, v5                    ; h ^ f
    v_lshlrev_b32 v7, 4, v7
    v_add_u32 v12, v6, v7                   ; ks=0
    v_xor_b32 v13, 32, v12
    v_xor_b32 v14, 64, v12
    v_xor_b32 v15, 0x60, v12
    """)
    a.i("""
    v_and_b32 v6, 15, v2
    v_lshrrev_b32 v6, 2, v6                 ; r
    v_lshlrev_b32 v7, 3, v5                 ; 8h
    v_add_u32 v7, v7, v6
    v_lshlrev_b32 v7, 7, v7                 ; *128
    v_lshrrev_b32 v8, 1, v6                 ; r>>1
    v_xor_b32 v8, s22, v8
    v_lshlrev_b32 v8, 6, v8
    v_add_u32 v7, v7, v8
    v_lshrrev_b32 v8, 4, v2
    v_and_b32 v8, 1, v8
    v_lshlrev_b32 v8, 5, v8
    v_add_u32 v7, v7, v8
    v_and_b32 v8, 3, v2
    v_lshlrev_b32 v8, 3, v8
    v_add_u32 v7, v7, v8
    v_add_u32 v16, 16384, v7
    """)
    a.i("s_mov_b32 s34, s22\ns_mov_b32 s35, s23")
    ACC = 64
    def acc(rt, ty): return ACC + (rt*3 + ty)*16
    for r in range(ACC, ACC + 96):
        a.i(f"v_mov_b32 v{r}, 0")
    def xf(b, rt): return 20 + 20*b + 4*rt
    def wf(b, ty): return 28 + 20*b + 4*ty
    def reads(b, ks):
        for rt in range(2):
            a.i(f"ds_read_b128 {vr(xf(b,rt),4)}, v{VX+ks} offset:{rt*4096}")
        for ty in range(3):
            for rd in range(2):
                a.i(f"ds_read_b64_tr_b16 {vr(wf(b,ty)+2*rd,2)}, v{VW} offset:{ty*8192 + (16*ks+4*rd)*128}")
    def mfmas(b):
        for rt in range(2):
            for ty in range(3):
                A, B = (wf(b,ty), xf(b,rt)) if ty < 2 else (xf(b,rt), wf(b,ty))
                a.i(f"v_mfma_f32_32x32x16_bf16 {vr(acc(rt,ty),16)}, {vr(A,4)}, {vr(B,4)}, {vr(acc(rt,ty),16)}")
    def bump(st):
        d = SLOT if (st % 4) != 3 else -3*SLOT
        for r in (12, 13, 14, 15, 16):
            a.i(f"v_add_u32 v{r}, {d}, v{r}")
    a.i("s_waitcnt vmcnt(30)")
    a.i("s_barrier")
    reads(0, 0)
    b = 0
    for st in range(NST):
        for ks in range(4):
            if ks < 3:
                reads(b ^ 1, ks + 1)
                a.i("s_waitcnt lgkmcnt(8)")
                mfmas(b)
            else:
                a.i("s_waitcnt lgkmcnt(0)")
                if st < NST - 1:
                    n = 10 * min(2, 7 - (st + 1))
                    a.i(f"s_waitcnt vmcnt({n})")
                    a.i("s_barrier")
                    if st + 4 < NST:
                        dma_stage(st + 4)
                    bump(st)
                    reads(b ^ 1, 0)
                mfmas(b)
            b ^= 1
    a.i("s_nop 15")
    a.i("""
    s_lshl_b32 s21, s7, 2
    s_lshl_b32 s22, s35, 1
    s_add_u32 s21, s21, s22                 ; rtg0
    s_lshl_b32 s22, s6, 2
    s_lshl_b32 s23, s34, 1
    s_add_u32 s22, s22, s23                 ; head0
    v_lshlrev_b32 v3, 4, v2                 ; l*16
    """)
    a.i(f"""
    s_mul_i32 s38, s5, {WS_QB-WS_QA}
    s_add_u32 s36, s38, {WS_QA}
    s_add_u32 s37, s38, {WS_KA}
    s_add_u32 s38, s38, {WS_VA}
    s_lshl_b32 s39, s22, 16                 ; head0*65536
    s_lshl_b32 s40, s21, 10                 ; rtg0*1024
    s_add_u32 s39, s39, s40
    s_add_u32 s36, s36, s39
    s_add_u32 s37, s37, s39                 ; K base
    s_mul_i32 s39, s22, {HEAD_V}
    s_mul_i32 s40, s21, {VT}
    s_add_u32 s39, s39, s40
    s_add_u32 s38, s38, s39
    s_mov_b32 s41, 0x3eb8aa3b               ; 0.25*log2(e)
    """)
    T = 20
    for rt in range(2):
        q = acc(rt, 0)
        for i in range(16):
            a.i(f"v_mul_f32 v{q+i}, s41, v{q+i}")
        for ty, sb in ((0, 36), (1, 37)):
            r = acc(rt, ty)
            t = T + 8*ty
            for i in range(8):
                a.i(f"v_cvt_pk_bf16_f32 v{t+i}, v{r+2*i}, v{r+2*i+1}")
            for hd in range(2):
                a.i(f"s_add_u32 s42, s{sb}, {hd*HEAD_QK + rt*1024}")
                a.i(f"buffer_store_dwordx4 {vr(t+4*hd,4)}, v3, s[16:19], s42 offen")
    a.i(f"""
    v_and_b32 v4, 15, v2
    v_lshlrev_b32 v4, 4, v4                 ; d*16
    v_lshrrev_b32 v5, 5, v2                 ; h
    v_mul_u32_u24 v5, 272, v5
    v_add_u32 v4, v4, v5
    v_lshrrev_b32 v5, 4, v2
    v_and_b32 v5, 1, v5                     ; hd
    v_mul_u32_u24 v5, {HEAD_V}, v5
    v_add_u32 v4, v4, v5                    ; voff_v
    """)
    for rt in range(2):
        r = acc(rt, 2)
        t = T + 16 + 8*rt
        for i in range(8):
            a.i(f"v_cvt_pk_bf16_f32 v{t+i}, v{r+2*i}, v{r+2*i+1}")
        for tt in range(2):
            a.i(f"s_add_u32 s42, s38, {rt*VT + tt*544}")
            a.i(f"buffer_store_dwordx4 {vr(t+4*tt,4)}, v4, s[16:19], s42 offen")
    a.i(f"""
    v_and_b32 v5, 1, v2
    v_mul_u32_u24 v5, {HEAD_V}, v5
    v_bfe_u32 v6, v2, 1, 1
    v_mul_u32_u24 v6, {VT}, v6
    v_add_u32 v5, v5, v6
    v_bfe_u32 v6, v2, 2, 1
    v_mul_u32_u24 v6, 544, v6
    v_add_u32 v5, v5, v6
    v_bfe_u32 v6, v2, 3, 1
    v_mul_u32_u24 v6, 272, v6
    v_add_u32 v5, v5, v6
    v_add_u32 v5, 256, v5
    v_mov_b32 v6, 0x7ff00000
    v_cmp_gt_u32 vcc, 16, v2
    v_mov_b32 v8, 0x3f803f80
    v_mov_b32 v9, 0x3f803f80
    v_cndmask_b32 v5, v6, v5, vcc
    v_mov_b32 v10, 0x3f803f80
    v_mov_b32 v11, 0x3f803f80
    s_nop 1
    buffer_store_dwordx4 v[8:11], v5, s[16:19], s38 offen
    K1_DONE:
    s_endpgm
    """)
    return kernel_desc(name, 160)
```

```python
from common import *

def lane_masks_B():
    out = {}
    for tile in (0, 1):
        for i in range(16):
            m = 0
            for l in range(64):
                q = l & 31; h = l >> 5
                kk = (i & 3) + 8 * (i >> 2) + 4 * h
                d = q - kk + (32 if tile == 0 else 0)
                if 0 <= d <= 14 and d % 2 == 0:
                    m |= 1 << l
            out[(tile, i)] = m
    return out

def gen_k2(a, name="k2_attn_kernel"):
    kernel_header(a, name)
    LV = 65536
    Q = 4
    KF = 8
    V0 = 12
    V1 = 16
    PK = 20
    C = 32
    SX = 48
    SY = 64
    O = 80
    AK = 2
    AV = 3
    a.i(f"""
    s_cmp_ge_u32 s2, 256
    s_cbranch_scc1 K2_DONE
    s_load_dwordx2 s[32:33], s[0:1], 64     ; ws
    v_lshrrev_b32 v1, 6, v0
    v_and_b32 v0, 63, v0                    ; lane
    s_and_b32 s3, s2, 7                     ; j
    v_readfirstlane_b32 s20, v1             ; wave w
    s_lshr_b32 s4, s2, 3                    ; t
    s_and_b32 s5, s4, 3
    s_lshl_b32 s3, s3, 2
    s_add_u32 s5, s5, s3                    ; head
    s_lshr_b32 s4, s4, 2                    ; qb
    s_lshl_b32 s4, s4, 3
    s_add_u32 s6, s4, s20
    v_lshlrev_b32 v1, 4, v0                 ; l*16
    v_and_b32 v2, 31, v0
    v_and_b32 v3, 15, v2
    v_cmp_eq_u32 vcc, 16, v2
    v_lshrrev_b32 v28, 5, v0                ; h
    v_mul_u32_u24 v28, 272, v28
    v_cndmask_b32 v3, v3, v2, vcc           ; chunk
    v_lshlrev_b32 v3, 4, v3
    v_add_u32 v3, v3, v28                   ; voff_v
    s_waitcnt lgkmcnt(0)
    """)
    srd(a, 16, 32, 33, WS_SIZE)
    BQ = 96; BK0 = 100; BK1 = 104; BV0 = 108; BV1 = 112; BV2 = 116
    a.i(f"""
    s_lshl_b32 s21, s5, 16                  ; head*65536
    s_lshl_b32 s22, s6, 10                  ; qt*1024
    s_add_u32 s23, s21, s22
    s_max_i32 s24, s6, 1
    s_sub_u32 s24, s24, 1
    s_lshl_b32 s25, s24, 10
    s_add_u32 s25, s25, s21
    s_add_u32 s26, s23, {WS_QB}
    buffer_load_dwordx4 {vr(BQ,4)}, v1, s[16:19], s26 offen
    s_add_u32 s26, s25, {WS_KB}
    buffer_load_dwordx4 {vr(BK0,4)}, v1, s[16:19], s26 offen
    s_add_u32 s26, s23, {WS_KB}
    buffer_load_dwordx4 {vr(BK1,4)}, v1, s[16:19], s26 offen
    s_mul_i32 s27, s5, {HEAD_V}             ; head*HEAD_V
    s_mul_i32 s28, s24, {VT}
    s_add_u32 s28, s28, s27
    s_add_u32 s26, s28, {WS_VB + 544}
    buffer_load_dwordx4 {vr(BV0,4)}, v3, s[16:19], s26 offen
    s_mul_i32 s28, s6, {VT}
    s_add_u32 s28, s28, s27
    s_add_u32 s26, s28, {WS_VB}
    buffer_load_dwordx4 {vr(BV1,4)}, v3, s[16:19], s26 offen offset:0
    buffer_load_dwordx4 {vr(BV2,4)}, v3, s[16:19], s26 offen offset:544
    s_add_u32 s26, s23, {WS_QA}
    buffer_load_dwordx4 {vr(Q,4)}, v1, s[16:19], s26 offen
    """)
    a.i(f"""
    s_lshl_b32 s29, s20, 10                 ; w*1024
    s_add_u32 s30, s21, s29
    s_add_u32 s30, s30, {WS_KA}
    s_add_u32 s31, s27, s29
    s_add_u32 s31, s31, {WS_VA}
    """)
    for n in range(8):
        a.i(f"s_add_u32 m0, s29, {n*8192}")
        a.i(f"s_add_u32 s26, s30, {n*8192}")
        a.i(f"buffer_load_dwordx4 v1, s[16:19], s26 offen lds")
        a.i(f"s_add_u32 m0, s29, {LV + n*8192}")
        a.i(f"s_add_u32 s26, s31, {n*8192}")
        a.i(f"buffer_load_dwordx4 v1, s[16:19], s26 offen lds")
    a.i(f"""
    s_and_b32 s34, s20, 3
    s_lshl_b32 s34, s34, 10
    s_add_u32 m0, s34, {LV + 65536}
    s_add_u32 s26, s27, s34
    s_add_u32 s26, s26, {WS_VA + 65536}
    buffer_load_dwordx4 v1, s[16:19], s26 offen lds
    """)
    masks = lane_masks_B()
    BS0 = SX
    BS1 = SY
    NEG = 29
    a.i(f"""
    v_mov_b32 v{NEG}, 0xff800000
    s_waitcnt vmcnt(22)
    v_mfma_f32_32x32x16_bf16 {vr(BS0,16)}, {vr(BK0,4)}, {vr(BQ,4)}, 0
    s_waitcnt vmcnt(21)
    v_mfma_f32_32x32x16_bf16 {vr(BS1,16)}, {vr(BK1,4)}, {vr(BQ,4)}, 0
    s_cmp_eq_u32 s6, 0
    s_cselect_b32 s35, 0, -1
    """)
    a.i("s_nop 7\ns_nop 7")
    elems = [(0, i) for i in range(8, 16)] + [(1, i) for i in range(16)]
    def sreg(t, i): return (BS0 if t == 0 else BS1) + i
    for (t, i) in elems:
        m = masks[(t, i)]
        lo, hi = m & 0xffffffff, m >> 32
        if t == 0:
            a.i(f"s_and_b32 s36, s35, {lo:#x}")
            a.i(f"s_and_b32 s37, s35, {hi:#x}")
        else:
            a.i(f"s_mov_b32 s36, {lo:#x}")
            a.i(f"s_mov_b32 s37, {hi:#x}")
        a.i(f"v_cndmask_b32 v{sreg(t,i)}, v{NEG}, v{sreg(t,i)}, s[36:37]")
    regs = [sreg(t, i) for (t, i) in elems]
    M = 30
    a.i(f"v_max3_f32 v{M}, v{regs[0]}, v{regs[1]}, v{regs[2]}")
    k = 3
    while k + 1 < len(regs):
        a.i(f"v_max3_f32 v{M}, v{M}, v{regs[k]}, v{regs[k+1]}")
        k += 2
    if k < len(regs):
        a.i(f"v_max_f32 v{M}, v{M}, v{regs[k]}")
    a.i(f"""
    v_mov_b32 v31, v{M}
    s_nop 1
    v_permlane32_swap_b32 v{M}, v31
    s_nop 1
    v_max_f32 v{M}, v{M}, v31
    """)
    for r in regs:
        a.i(f"v_sub_f32 v{r}, v{r}, v{M}")
    for r in regs:
        a.i(f"v_exp_f32 v{r}, v{r}")
    for i in range(4):
        a.i(f"v_cvt_pk_bf16_f32 v{PK+i}, v{BS0+8+2*i}, v{BS0+9+2*i}")
    for i in range(8):
        a.i(f"v_cvt_pk_bf16_f32 v{C+i}, v{BS1+2*i}, v{BS1+2*i+1}")
    a.i(f"""
    s_waitcnt vmcnt(18)
    s_nop 1
    v_mfma_f32_32x32x16_bf16 {vr(O,16)}, {vr(BV0,4)}, {vr(PK,4)}, 0
    v_mfma_f32_32x32x16_bf16 {vr(O,16)}, {vr(BV1,4)}, {vr(C,4)}, {vr(O,16)}
    v_mfma_f32_32x32x16_bf16 {vr(O,16)}, {vr(BV2,4)}, {vr(C+4,4)}, {vr(O,16)}
    s_nop 15
    """)
    def normalize_store(base_const, tag):
        a.i(f"""
        v_mov_b32 v28, v{O+8}
        v_mov_b32 v29, v{O+8}
        s_nop 1
        v_permlane32_swap_b32 v28, v29
        s_nop 1
        v_rcp_f32 v28, v28
        s_nop 0
        """)
        for i in range(8):
            a.i(f"v_mul_f32 v{O+i}, v{O+i}, v28")
        for i in range(4):
            a.i(f"v_cvt_pk_bf16_f32 v{PK+i}, v{O+2*i}, v{O+2*i+1}")
        a.i(f"""
        s_lshl_b32 s26, s6, 5
        s_add_u32 s26, s26, s5
        s_lshl_b32 s26, s26, 10
        s_add_u32 s26, s26, {base_const}
        buffer_store_dwordx4 {vr(PK,4)}, v1, s[16:19], s26 offen
        """)
    normalize_store(WS_OB, "B")
    a.i(f"""
    v_mov_b32 v{AK}, v1
    v_add_u32 v{AV}, {LV}, v{AV}
    s_mov_b32 s40, 0
    s_waitcnt vmcnt(14)
    s_barrier
    """)
    a.i(f"""
    ds_read_b128 {vr(KF,4)}, v{AK}
    s_waitcnt lgkmcnt(0)
    v_mfma_f32_32x32x16_bf16 {vr(SX,16)}, {vr(KF,4)}, {vr(Q,4)}, 0
    s_nop 15
    """)
    def rowmax(src, dst):
        a.i(f"v_max3_f32 v{dst}, v{src}, v{src+1}, v{src+2}")
        for k in range(3, 15, 2):
            a.i(f"v_max3_f32 v{dst}, v{dst}, v{src+k}, v{src+k+1}")
        a.i(f"v_max_f32 v{dst}, v{dst}, v{src+15}")
    rowmax(SX, 30)
    a.i("K2_SETM:")
    a.i(f"""
    v_mov_b32 v31, v30
    s_nop 1
    v_permlane32_swap_b32 v30, v31
    s_nop 1
    v_max_f32 v30, v30, v31
    v_sub_f32 v30, 0, v30
    """)
    for i in range(16):
        a.i(f"v_mov_b32 v{C+i}, v30")
    for i in range(16):
        a.i(f"v_mov_b32 v{O+i}, 0")
    a.i(f"""
    ds_read_b128 {vr(KF,4)}, v{AK}
    s_waitcnt lgkmcnt(0)
    v_mfma_f32_32x32x16_bf16 {vr(SX,16)}, {vr(KF,4)}, {vr(Q,4)}, {vr(C,16)}
    ds_read_b128 {vr(KF,4)}, v{AK} offset:1024
    ds_read_b128 {vr(V0,4)}, v{AV}
    ds_read_b128 {vr(V1,4)}, v{AV} offset:544
    s_mov_b32 s41, 0                        ; iteration
    s_nop 15
    K2_LOOP:
    """)
    a.i(f"""
    s_cmp_eq_u32 s40, 1
    s_cbranch_scc1 K2_NOBAR
    s_cmp_eq_u32 s41, 1
    s_cbranch_scc0 K2_CHK3
    s_waitcnt vmcnt(10)
    s_barrier
    s_branch K2_NOBAR
    K2_CHK3:
    s_cmp_eq_u32 s41, 3
    s_cbranch_scc0 K2_NOBAR
    s_waitcnt vmcnt(0)
    s_barrier
    K2_NOBAR:
    """)
    UN = 8
    for u in range(UN):
        X, Y = (SX, SY) if u % 2 == 0 else (SY, SX)
        for i in range(4):
            a.i(f"v_exp_f32 v{X+i}, v{X+i}")
        a.i("s_waitcnt lgkmcnt(2)")
        a.i(f"v_mfma_f32_32x32x16_bf16 {vr(Y,16)}, {vr(KF,4)}, {vr(Q,4)}, {vr(C,16)}")
        a.i(f"ds_read_b128 {vr(KF,4)}, v{AK} offset:{(u+2)*1024}")
        for i in range(4, 8):
            a.i(f"v_exp_f32 v{X+i}, v{X+i}")
        for i in range(4):
            a.i(f"v_cvt_pk_bf16_f32 v{PK+i}, v{X+2*i}, v{X+2*i+1}")
        for i in range(8, 10):
            a.i(f"v_exp_f32 v{X+i}, v{X+i}")
        a.i("s_waitcnt lgkmcnt(2)")
        a.i(f"v_mfma_f32_32x32x16_bf16 {vr(O,16)}, {vr(V0,4)}, {vr(PK,4)}, {vr(O,16)}")
        a.i(f"ds_read_b128 {vr(V0,4)}, v{AV} offset:{(u+1)*VT}")
        for i in range(10, 16):
            a.i(f"v_exp_f32 v{X+i}, v{X+i}")
        a.i("s_nop 0")
        for i in range(4, 8):
            a.i(f"v_cvt_pk_bf16_f32 v{PK+i}, v{X+2*i}, v{X+2*i+1}")
        a.i("s_waitcnt lgkmcnt(2)")
        a.i("s_nop 0")
        a.i(f"v_mfma_f32_32x32x16_bf16 {vr(O,16)}, {vr(V1,4)}, {vr(PK+4,4)}, {vr(O,16)}")
        a.i(f"ds_read_b128 {vr(V1,4)}, v{AV} offset:{(u+1)*VT + 544}")
    a.i(f"""
    v_add_u32 v{AK}, {UN*1024}, v{AK}
    v_add_u32 v{AV}, {UN*VT}, v{AV}
    s_add_u32 s41, s41, 1
    s_cmp_lt_u32 s41, 8
    s_cbranch_scc1 K2_LOOP
    s_waitcnt lgkmcnt(0)
    s_nop 15
    """)
    a.i(f"""
    s_cmp_eq_u32 s40, 1
    s_cbranch_scc1 K2_FIN
    v_mov_b32 v28, v{O+8}
    v_mov_b32 v29, v{O+8}
    s_nop 1
    v_permlane32_swap_b32 v28, v29
    v_and_b32 v30, 0x7fffffff, v{O}
    """)
    for i in range(1, 8):
        a.i(f"v_and_b32 v31, 0x7fffffff, v{O+i}")
        a.i(f"v_max_u32 v30, v30, v31")
    a.i(f"""
    v_and_b32 v31, 0x7fffffff, v28
    v_max_u32 v30, v30, v31
    v_mov_b32 v31, 0x7b800000
    v_cmp_le_u32 vcc, v31, v30
    s_nop 4
    s_cbranch_vccz K2_FIN
    s_mov_b32 s40, 1
    v_mov_b32 v30, 0xff800000
    v_mov_b32 v{AK}, v1
    v_subrev_u32 v{AV}, {8*UN*VT}, v{AV}
    s_mov_b32 s41, 0
    K2_MAXLOOP:
    ds_read_b128 {vr(KF,4)}, v{AK}
    s_waitcnt lgkmcnt(0)
    v_mfma_f32_32x32x16_bf16 {vr(SX,16)}, {vr(KF,4)}, {vr(Q,4)}, 0
    v_add_u32 v{AK}, 1024, v{AK}
    s_nop 15
    """)
    rowmax(SX, 31)
    a.i(f"""
    v_max_f32 v30, v30, v31
    s_add_u32 s41, s41, 1
    s_cmp_lt_u32 s41, 64
    s_cbranch_scc1 K2_MAXLOOP
    v_mov_b32 v{AK}, v1
    s_branch K2_SETM
    K2_FIN:
    """)
    normalize_store(WS_OA, "A")
    a.i("""
    K2_DONE:
    s_endpgm
    """)
    return kernel_desc(name, 128)
```

```python
from common import *

def gen_k3(a, name="k3_proj_kernel"):
    kernel_header(a, name)
    a.i(f"""
    s_cmp_ge_u32 s2, 256
    s_cbranch_scc1 K3_DONE
    s_load_dwordx2 s[24:25], s[0:1], 16     ; A_wo
    s_load_dwordx2 s[26:27], s[0:1], 40     ; B_wo
    s_load_dwordx2 s[28:29], s[0:1], 48     ; out
    s_load_dwordx2 s[32:33], s[0:1], 64     ; ws
    v_lshrrev_b32 v1, 6, v0
    v_and_b32 v0, 63, v0                    ; lane
    s_and_b32 s3, s2, 7                     ; j
    v_readfirstlane_b32 s20, v1             ; w
    s_lshr_b32 s4, s2, 3                    ; t
    s_lshr_b32 s5, s3, 2                    ; branch
    s_and_b32 s6, s4, 7                     ; fb
    s_and_b32 s7, s3, 3
    s_lshl_b32 s7, s7, 2
    s_lshr_b32 s4, s4, 3
    s_add_u32 s7, s7, s4                    ; rb
    s_waitcnt lgkmcnt(0)
    s_cmp_eq_u32 s5, 0
    s_cselect_b32 s24, s24, s26
    s_cselect_b32 s25, s25, s27
    s_mul_i32 s34, s5, {WS_OB-WS_OA}
    s_add_u32 s34, s34, {WS_OA}
    """)
    srd(a, 8, 24, 25, 0x80000)
    srd(a, 12, 28, 29, 0x400000)
    srd(a, 16, 32, 33, WS_SIZE)
    a.i("""
    v_lshrrev_b32 v2, 3, v0
    s_lshl_b32 s21, s20, 3
    v_add_u32 v2, s21, v2
    v_lshlrev_b32 v2, 10, v2
    s_lshl_b32 s21, s6, 7
    v_add_u32 v2, s21, v2
    v_and_b32 v3, 7, v0
    v_lshrrev_b32 v3, 2, v3
    v_bfe_u32 v4, v0, 4, 1
    v_xor_b32 v3, v3, v4
    v_lshlrev_b32 v3, 6, v3
    v_add_u32 v2, v2, v3
    v_and_b32 v3, 3, v0
    v_lshlrev_b32 v3, 4, v3
    v_add_u32 v2, v2, v3                    ; voff_wo
    v_lshlrev_b32 v1, 4, v0                 ; l*16
    s_lshl_b32 s22, s20, 10                 ; w*1024
    s_lshl_b32 s23, s7, 2
    s_add_u32 s23, s23, s20
    s_lshl_b32 s35, s23, 15
    s_add_u32 s34, s34, s35
    """)
    OF = 64
    for q in range(4):
        for n in range(4*q, 4*q+4):
            a.i(f"s_add_u32 m0, s22, {n*4096}")
            a.i(f"s_mov_b32 s21, {n*32768}")
            a.i(f"buffer_load_dwordx4 v2, s[8:11], s21 offen lds")
        for hh in range(8*q, 8*q+8):
            if hh % 4 == 0:
                a.i(f"s_add_u32 s36, s34, {hh*1024}")
            a.i(f"buffer_load_dwordx4 {vr(OF+4*hh,4)}, v1, s[16:19], s36 offen offset:{(hh%4)*1024}")
    a.i("""
    v_lshrrev_b32 v3, 5, v0                 ; h
    v_lshlrev_b32 v3, 2, v3
    v_bfe_u32 v4, v0, 2, 2                  ; r
    v_add_u32 v3, v3, v4
    v_lshlrev_b32 v3, 7, v3
    v_lshrrev_b32 v4, 1, v4                 ; r>>1
    v_lshlrev_b32 v4, 6, v4
    v_add_u32 v3, v3, v4
    v_and_b32 v4, 1, v0
    v_lshlrev_b32 v4, 5, v4
    v_add_u32 v3, v3, v4
    v_bfe_u32 v4, v0, 4, 1
    v_lshlrev_b32 v4, 4, v4
    v_add_u32 v3, v3, v4
    v_bfe_u32 v4, v0, 1, 1
    v_lshlrev_b32 v4, 3, v4
    v_add_u32 v4, v3, v4                    ; ft=0
    v_xor_b32 v5, 64, v4                    ; ft=1
    """)
    ACC = 16
    for r in range(ACC, ACC+32):
        a.i(f"v_mov_b32 v{r}, 0")
    WF = 48
    def reads(b, ks):
        for ft in range(2):
            for rd in range(2):
                a.i(f"ds_read_b64_tr_b16 {vr(WF+8*b+4*ft+2*rd,2)}, v{4+ft} offset:{(16*ks+8*rd)*128}")
    b = 0
    for q in range(4):
        a.i(f"s_waitcnt vmcnt({12*(3-q)})")
        a.i("s_barrier")
        reads(b, 8*q)
        for ks in range(8*q, 8*q+8):
            if ks < 8*q+7:
                reads(b ^ 1, ks+1)
                a.i("s_waitcnt lgkmcnt(4)")
            else:
                a.i("s_waitcnt lgkmcnt(0)")
            for ft in range(2):
                a.i(f"v_mfma_f32_32x32x16_bf16 {vr(ACC+16*ft,16)}, {vr(WF+8*b+4*ft,4)}, {vr(OF+4*ks,4)}, {vr(ACC+16*ft,16)}")
            b ^= 1
    a.i("""
    s_nop 15
    v_and_b32 v2, 31, v0
    s_lshl_b32 s21, s23, 5
    v_add_u32 v2, s21, v2                   ; row
    v_lshlrev_b32 v2, 11, v2                ; *2048
    v_lshrrev_b32 v3, 5, v0
    v_lshlrev_b32 v3, 5, v3                 ; h*32 bytes
    v_add_u32 v2, v2, v3
    s_lshl_b32 s21, s5, 10
    s_lshl_b32 s22, s6, 7
    s_add_u32 s21, s21, s22
    """)
    for ft in range(2):
        for i in range(8):
            a.i(f"v_cvt_pk_bf16_f32 v{48+8*ft+i}, v{ACC+16*ft+2*i}, v{ACC+16*ft+2*i+1}")
        a.i(f"buffer_store_dwordx4 {vr(48+8*ft,4)}, v2, s[12:15], s21 offen offset:{ft*64}")
        a.i(f"buffer_store_dwordx4 {vr(48+8*ft+4,4)}, v2, s[12:15], s21 offen offset:{ft*64+16}")
    a.i("""
    K3_DONE:
    s_endpgm
    """)
    return kernel_desc(name, 192)
```

```python
import sys
from common import *
from k1 import gen_k1
from k2 import gen_k2
from k3 import gen_k3

HEAD = open("concat_heads__mha_block__sliding_local_dilated__prompt.s.ref").read().split("; Override launch")[0]

def build():
    a = Asm()
    a(HEAD.rstrip("\n"))
    a("; @launch kernel=k1_qkv_kernel grid=(256,1,1) block=(256,1,1) lds=163840")
    a("; @launch kernel=k2_attn_kernel grid=(256,1,1) block=(512,1,1) lds=137216")
    a("; @launch kernel=k3_proj_kernel grid=(256,1,1) block=(256,1,1) lds=65536")
    a('.amdgcn_target "amdgcn-amd-amdhsa--gfx950"')
    a(".text")
    descs = [gen_k1(a), gen_k2(a), gen_k3(a)]
    a('.section .rodata,"a"')
    for d in descs:
        a(d)
    return a.text()

if __name__ == "__main__":
    out = sys.argv[1] if len(sys.argv) > 1 else "concat_heads__mha_block__sliding_local_dilated__prompt.s"
    open(out, "w").write(build())
```

```python
from common import *
import os
STAMP = os.environ.get('STAMP','0')=='1'
OPT = os.environ.get('OPT','')

HV = 65536
KH0, VH0, KH1, VH1, SCR = 0, 32768, 65536, 98304, 131072
SLOTS = [65536, 98304, 131072]
BK_LDS, BV_LDS, BQ_LDS = SCR, SCR + 8192, SCR + 16384
WOB_LDS, WOA_LDS = 0, 65536
LDS_TOTAL = 163840
WS_VA2, WS_VB2 = WS_VA, WS_VB
FL = 0x1200000
FL_A = FL
FL_H = FL + 0x1000
FL_OA = FL + 0x2000
FL_OB = FL + 0x4000
WS_SIZE2 = 0x1210000
STAMP_OFF = 0x2000000
SPIN_MAX = 200000
ONES = 0x3f803f80

def key_of(i, h):
    return 16*(i >> 3) + 8*h + (i & 7)
def lane_masks_B():
    out = {}
    for tile in (0, 1):
        for i in range(16):
            m = 0
            for l in range(64):
                q = l & 31; h = l >> 5
                d = q - key_of(i, h) + (32 if tile == 0 else 0)
                if 0 <= d <= 14 and d % 2 == 0:
                    m |= 1 << l
            out[(tile, i)] = m
    return out

def gen_fused(a, name):
    lbl = [0]
    def label(p):
        lbl[0] += 1
        return f"{p}_{lbl[0]}"
    kernel_header(a, name)
    i = a.i
    SC = "sc0 sc1"
    RT = os.environ.get('RT','0')=='1'
    STG = os.environ.get('STG','0')=='1'
    def stg(k):
        if STAMP and STG:
            i(f"s_memtime s[{64+2*k}:{65+2*k}]")
    def stamp(k, real=False):
        if STAMP and STG and k not in (0, 13, 14, 15): return
        if STAMP:
            i(f"{'s_memrealtime' if (real or RT) else 's_memtime'} s[{64+2*k}:{65+2*k}]")
    i(f"""
    s_cmp_ge_u32 s2, 256
    s_cbranch_scc1 F_DONE
    s_load_dwordx4 s[24:27], s[0:1], 0      ; A_x, A_w
    s_load_dwordx2 s[38:39], s[0:1], 16     ; A_wo
    s_load_dwordx2 s[42:43], s[0:1], 24     ; B_x
    s_load_dwordx2 s[44:45], s[0:1], 32     ; B_w
    s_load_dwordx2 s[40:41], s[0:1], 40     ; B_wo
    s_load_dwordx2 s[36:37], s[0:1], 48     ; out
    s_load_dwordx2 s[34:35], s[0:1], 56     ; dbg
    s_load_dwordx2 s[32:33], s[0:1], 64     ; ws
    v_lshrrev_b32 v1, 6, v0
    v_and_b32 v0, 63, v0                    ; lane
    s_and_b32 s3, s2, 7                     ; j
    v_readfirstlane_b32 s20, v1             ; wave
    s_lshr_b32 s4, s2, 3                    ; t
    s_and_b32 s5, s3, 3
    s_lshl_b32 s5, s5, 3
    s_lshr_b32 s6, s4, 2
    s_add_u32 s48, s5, s6
    s_lshr_b32 s5, s3, 2
    s_lshl_b32 s5, s5, 2
    s_and_b32 s47, s4, 3
    s_lshl_b32 s49, s47, 1
    s_add_u32 s49, s49, s6
    s_and_b32 s49, s49, 7                   ; rotation
    s_add_u32 s47, s47, s5                  ; g = 4(j>>2) + (t&3)
    s_lshl_b32 s5, s3, 2
    s_and_b32 s6, s4, 3
    s_add_u32 s50, s5, s6                   ; head = 4j + (t&3)
    s_lshr_b32 s51, s4, 2                   ; qb
    s_lshl_b32 s5, s3, 2
    s_lshr_b32 s6, s4, 3
    s_add_u32 s52, s5, s6                   ; rb64 = 4j + (t>>3)
    s_and_b32 s53, s4, 7                    ; fb
    v_lshlrev_b32 v1, 4, v0                 ; l*16
    s_mov_b32 s54, 0x0000ffff
    s_mov_b32 s55, 0x0000ffff
    s_waitcnt lgkmcnt(0)
    """)
    srd(a, 8, 24, 25, 0x200000)
    srd(a, 12, 26, 27, 0x180000)
    srd(a, 16, 32, 33, WS_SIZE2)
    i("""
    s_mov_b32 s28, s34
    s_and_b32 s29, s35, 0xffff
    s_mov_b32 s30, 256
    s_mov_b32 s31, 0x00020000
    """)
    stamp(0); stamp(15, real=True)
    i(f"""
    v_and_b32 v3, 15, v0
    v_lshlrev_b32 v3, 4, v3
    v_lshrrev_b32 v4, 5, v0
    v_lshlrev_b32 v4, 8, v4
    v_add_u32 v250, v3, v4
    s_cmp_ge_u32 s20, 4
    s_cbranch_scc1 F_LOADER
    """)
    def preset_v(regs, tmp):
        i(f"v_and_b32 v{tmp}, 31, v0\nv_cmp_eq_u32 vcc, 16, v{tmp}\nv_mov_b32 v{tmp}, {ONES:#x}\ns_nop 0")
        for r in regs:
            i(f"v_cndmask_b32 v{r}, 0, v{tmp}, vcc")
    def flag_store(soff, vt):
        i(f"""
        v_mov_b32 v{vt}, s46
        v_mov_b32 v{vt+1}, 0
        s_mov_b64 exec, 1
        buffer_store_dword v{vt}, v{vt+1}, s[16:19], {soff} offen {SC}
        s_mov_b64 exec, -1
        """)
    def poll(soff, vtmp, lanemask_and=None):
        L = label("POLL"); E = label("POLLE")
        if lanemask_and is None:
            i(f"v_lshlrev_b32 v{vtmp}, 2, v0")
        elif lanemask_and == 0:
            i(f"v_mov_b32 v{vtmp}, 0")
        else:
            i(f"v_and_b32 v{vtmp}, {lanemask_and}, v0\nv_lshlrev_b32 v{vtmp}, 2, v{vtmp}")
        i(f"s_mov_b32 s56, 0")
        i(f"{L}:")
        i(f"""
        buffer_load_dword v{vtmp+1}, v{vtmp}, s[16:19], {soff} offen {SC}
        s_add_u32 s56, s56, 1
        s_cmp_gt_u32 s56, {SPIN_MAX}
        s_cbranch_scc1 {E}
        s_waitcnt vmcnt(0)
        v_cmp_ne_u32 vcc, s46, v{vtmp+1}
        s_nop 4
        s_cbranch_vccnz {L}
        {E}:
        s_waitcnt vmcnt(0)
        """)
    def nonce_issue(vt):
        i(f"v_mov_b32 v{vt}, 0")
        i(f"buffer_load_dword v{vt+1}, v{vt}, s[28:31], 0 offen {SC}")
    def get_nonce(vt):
        L = label("NN"); E = label("NNE")
        i(f"""
        s_mov_b32 s56, 0
        {L}:
        v_readfirstlane_b32 s46, v{vt+1}
        s_cmp_lg_u32 s46, 0
        s_cbranch_scc1 {E}
        s_add_u32 s56, s56, 1
        s_cmp_gt_u32 s56, {SPIN_MAX}
        s_cbranch_scc1 {E}
        buffer_load_dword v{vt+1}, v{vt}, s[28:31], 0 offen {SC}
        s_waitcnt vmcnt(0)
        s_branch {L}
        {E}:
        """)
    def normalize(o, t):
        i(f"""
        v_mov_b32 v{t}, v{o+8}
        v_mov_b32 v{t+1}, v{o+8}
        s_nop 1
        v_permlane32_swap_b32 v{t}, v{t+1}
        s_nop 1
        v_rcp_f32 v{t}, v{t}
        s_nop 0
        """)
        for k in range(8):
            i(f"v_mul_f32 v{o+k}, v{o+k}, v{t}")
        for k in range(4):
            i(f"v_cvt_pk_bf16_f32 v{o+8+k}, v{o+2*k}, v{o+2*k+1}")
    def tree_max(regs, dst, tmp):
        regs = list(regs)
        half = (len(regs) // 2 + 1) // 3 * 3
        A, B = regs[:len(regs)//2], regs[len(regs)//2:]
        seqs = []
        for R, d in ((A, dst), (B, tmp)):
            s_ = [f"v_max3_f32 v{d}, v{R[0]}, v{R[1]}, v{R[2]}"]
            k = 3
            while k + 1 < len(R):
                s_.append(f"v_max3_f32 v{d}, v{d}, v{R[k]}, v{R[k+1]}"); k += 2
            if k < len(R): s_.append(f"v_max_f32 v{d}, v{d}, v{R[k]}")
            seqs.append(s_)
        for k in range(max(map(len, seqs))):
            for s_ in seqs:
                if k < len(s_): i(s_[k])
        i(f"v_max_f32 v{dst}, v{dst}, v{tmp}")
    def xhalf_max(r, t):
        i(f"""
        v_mov_b32 v{t}, v{r}
        s_nop 1
        v_permlane32_swap_b32 v{r}, v{t}
        s_nop 1
        v_max_f32 v{r}, v{r}, v{t}
        """)
    VX, VW = 12, 16
    ACC = 64
    def acc(ty): return ACC + 16*ty
    def xf(b): return 20 + 16*b
    def wf(b, ty): return 24 + 16*b + 4*ty
    def PK(ty): return 112 + 8*ty
    i(f"""
    s_and_b32 s58, s20, 1                   ; rt
    s_lshr_b32 s59, s20, 1                  ; c
    v_and_b32 v4, 31, v0
    v_lshrrev_b32 v5, 5, v0                 ; h
    s_lshl_b32 s21, s58, 5
    v_add_u32 v6, s21, v4
    v_lshlrev_b32 v6, 7, v6
    v_lshrrev_b32 v7, 1, v4
    v_and_b32 v7, 7, v7
    v_xor_b32 v7, v7, v5
    v_lshlrev_b32 v7, 4, v7
    v_add_u32 v6, v6, v7
    v_add_u32 v12, {SLOTS[0]}, v6
    v_xor_b32 v13, 32, v6
    v_add_u32 v13, {SLOTS[0]}, v13
    v_xor_b32 v14, 64, v6
    v_add_u32 v14, {SLOTS[0]}, v14
    v_xor_b32 v15, 0x60, v6
    v_add_u32 v15, {SLOTS[0]}, v15
    v_bfe_u32 v6, v0, 2, 2
    v_lshlrev_b32 v7, 3, v5
    v_add_u32 v7, v7, v6
    v_lshlrev_b32 v7, 7, v7
    v_lshrrev_b32 v8, 1, v6
    v_xor_b32 v8, s59, v8
    v_lshlrev_b32 v8, 6, v8
    v_add_u32 v7, v7, v8
    v_bfe_u32 v8, v0, 4, 1
    v_lshlrev_b32 v8, 5, v8
    v_add_u32 v7, v7, v8
    v_and_b32 v8, 3, v0
    v_lshlrev_b32 v8, 3, v8
    v_add_u32 v7, v7, v8
    v_add_u32 v16, {SLOTS[0] + 8192}, v7
    v_and_b32 v17, 0x33, v0
    v_bfe_u32 v18, v0, 2, 1
    v_lshlrev_b32 v18, 3, v18
    v_or_b32 v17, v17, v18
    v_bfe_u32 v18, v0, 3, 1
    v_lshlrev_b32 v18, 2, v18
    v_or_b32 v17, v17, v18
    v_lshlrev_b32 v17, 4, v17
    v_bfe_u32 v10, v0, 4, 1
    v_lshlrev_b32 v18, 16, v10
    v_add_u32 v18, v18, v250
    v_lshlrev_b32 v19, 11, v10
    v_add_u32 v19, v19, v250
    s_lshl_b32 s21, s48, 1
    s_add_u32 s60, s21, s58
    s_lshl_b32 s61, s47, 2
    s_lshl_b32 s21, s59, 1
    s_add_u32 s61, s61, s21
    s_lshl_b32 s21, s61, 16
    s_lshl_b32 s22, s60, 10
    s_add_u32 s62, s21, s22
    """)
    def rd_list(b, ks):
        L = [f"ds_read_b128 {vr(xf(b),4)}, v{VX+ks}"]
        for ty in range(3):
            for rd in range(2):
                L.append(f"ds_read_b64_tr_b16 {vr(wf(b,ty)+2*rd,2)}, v{VW} offset:{ty*8192 + (16*ks+4*rd)*128}")
        if os.environ.get('EXP2', '') == 'nords': L = ["s_nop 0"]*7
        if os.environ.get('EXP2', '') == 'notr': L = [L[0]] + ["s_nop 0"]*6
        if os.environ.get('EXP2', '') == 'nox': L = ["s_nop 0"] + L[1:]
        return L
    EXP = os.environ.get('EXP', '')
    def mf(b, ty, first):
        A, B = (wf(b,ty), xf(b)) if ty < 2 else (xf(b), wf(b,ty))
        c = "0" if first else vr(acc(ty),16)
        if EXP == 'nomfma': return "s_nop 0"
        if EXP == 'constop':
            return f"v_mfma_f32_32x32x16_bf16 {vr(acc(ty),16)}, v[200:203], v[204:207], {c}"
        if EXP == 'fixop':
            return f"v_mfma_f32_32x32x16_bf16 {vr(acc(ty),16)}, v[200:203], v[204:207], {c}"
        if EXP == 'mf16':
            return (f"v_mfma_f32_16x16x32_bf16 {vr(acc(ty),4)}, {vr(A,4)}, {vr(B,4)}, {vr(acc(ty),4)}\n"
                    f"v_mfma_f32_16x16x32_bf16 {vr(acc(ty)+4,4)}, {vr(A,4)}, {vr(B,4)}, {vr(acc(ty)+4,4)}")
        return f"v_mfma_f32_32x32x16_bf16 {vr(acc(ty),16)}, {vr(A,4)}, {vr(B,4)}, {c}"
    def bump(n):
        d = SLOTS[(n+1) % 3] - SLOTS[n % 3]
        for r in (12, 13, 14, 15, 16):
            i(f"v_add_u32 v{r}, {d}, v{r}")
    def pack(ty):
        r = acc(ty)
        if ty == 0:
            for k in range(16):
                i(f"v_mul_f32 v{r+k}, s27, v{r+k}")
        for k in range(8):
            i(f"v_cvt_pk_bf16_f32 v{PK(ty)+k}, v{r+2*k}, v{r+2*k+1}")
    def q_loads():
        i(f"""
        s_and_b32 s21, s20, 3
        s_lshl_b32 s21, s21, 1
        s_lshl_b32 s22, s51, 3
        s_add_u32 s21, s21, s22                 ; qtA
        s_lshl_b32 s21, s21, 10
        s_lshl_b32 s22, s50, 16
        s_add_u32 s21, s21, s22
        s_add_u32 s21, s21, {WS_QA}
        buffer_load_dwordx4 v[4:7], v1, s[16:19], s21 offen {SC}
        buffer_load_dwordx4 v[8:11], v1, s[16:19], s21 offen offset:1024 {SC}
        """)
    b = 0
    if EXP == 'constop':
        for r in range(200, 208): i(f"v_mov_b32 v{r}, 0")
    if EXP == 'fixop':
        for r in range(200, 208):
            i(f"v_mul_u32_u24 v{r}, {0x3c5a7*(r-199) & 0xffffff}, v0\nv_add_u32 v{r}, {0x3d2f3e71 + r*0x10203}, v{r}\nv_and_b32 v{r}, 0xbfffbfff, v{r}")
    i("s_barrier")
    stg(1)
    if STAMP and STG: i("s_memrealtime s[86:87]")
    for x in rd_list(b, 0): i(x)
    for n in range(16):
        for ks in range(4):
            first = (n % 8 == 0 and ks == 0)
            M = [mf(b, ty, first) for ty in range(3)]
            last_of_phase = (n % 8 == 7 and ks == 3)
            if ks < 3:
                R = rd_list(b ^ 1, ks + 1)
                i("s_waitcnt lgkmcnt(4)"); i(M[0]); i(R[0]); i(R[1])
                i("s_waitcnt lgkmcnt(4)"); i(M[1]); i(R[2]); i(R[3])
                i("s_waitcnt lgkmcnt(4)"); i(M[2]); i(R[4]); i(R[5]); i(R[6])
            else:
                i("s_waitcnt lgkmcnt(4)"); i(M[0])
                i("s_waitcnt lgkmcnt(2)"); i(M[1])
                i("s_waitcnt lgkmcnt(0)")
                if n < 15:
                    i("s_barrier")
                    if n in (0, 1, 2, 3, 7): stg((0, 1, 2, 3, 7).index(n) + 2)
                    if n == 5: nonce_issue(2)
                    if n == 10:
                        i(f"""
                        s_lshl_b32 s21, s61, 7
                        s_lshl_b32 s22, s60, 2
                        s_add_u32 s21, s21, s22
                        s_add_u32 s21, s21, {FL_A}
                        s_waitcnt vmcnt(0)
                        """)
                        flag_store("s21", 2)
                    if n == 14: q_loads()
                    bump(n)
                    if n != 7:
                        R = rd_list(b ^ 1, 0)
                        for x in R[:3]: i(x)
                        i(M[2])
                        for x in R[3:]: i(x)
                    else:
                        i(M[2])
                else:
                    i(M[2])
            b ^= 1
        if n == 7:
            stamp(1)
            i("s_waitcnt vmcnt(0)")
            get_nonce(2)
            i("s_mov_b32 s27, 0x3eb8aa3b\ns_nop 7")
            for ty, base, voff in ((1, WS_KA, 17), (2, WS_VA2, 18), (0, WS_QA, 1)):
                pack(ty)
                if ty < 2:
                    for hd in range(2):
                        i(f"s_add_u32 s21, s62, {base + hd*HEAD_QK}")
                        i(f"buffer_store_dwordx4 {vr(PK(ty)+4*hd,4)}, v{voff}, s[16:19], s21 offen {SC}")
                else:
                    i(f"s_add_u32 s21, s62, {base}")
                    i(f"buffer_store_dwordx4 {vr(PK(2),4)}, v18, s[16:19], s21 offen {SC}")
                    i(f"buffer_store_dwordx4 {vr(PK(2)+4,4)}, v18, s[16:19], s21 offen offset:512 {SC}")
            stamp(2)
            for x in rd_list(b, 0): i(x)
    stamp(3); stg(9)
    if STAMP and STG: i("s_memrealtime s[88:89]")
    i("s_mov_b32 s27, 0x3eb8aa3b\ns_nop 10")
    OFFB = WS_QB - WS_QA
    pack(1); pack(2)
    i("s_waitcnt vmcnt(0)")
    i("s_cmp_eq_u32 s58, 1\ns_cbranch_scc0 F_NOHALO")
    for hd in range(2):
        i(f"s_add_u32 s21, s62, {WS_KA + OFFB + hd*HEAD_QK}")
        i(f"buffer_store_dwordx4 {vr(PK(1)+4*hd,4)}, v17, s[16:19], s21 offen {SC}")
    i(f"s_add_u32 s21, s62, {WS_VA2 + OFFB}")
    i(f"buffer_store_dwordx4 {vr(PK(2),4)}, v18, s[16:19], s21 offen {SC}")
    i(f"buffer_store_dwordx4 {vr(PK(2)+4,4)}, v18, s[16:19], s21 offen offset:512 {SC}")
    i("F_NOHALO:")
    pack(0)
    i(f"""
    s_lshl_b32 s22, s59, 2
    s_add_u32 s22, s22, s58
    s_lshl_b32 s22, s22, 10                 ; (4c + rt)*1024
    v_add_u32 v2, s22, v17
    v_add_u32 v3, s22, v19
    v_add_u32 v48, s22, v1
    v_add_u32 v2, {BK_LDS}, v2
    v_add_u32 v3, {BV_LDS}, v3
    v_add_u32 v48, {BQ_LDS}, v48
    """)
    for hd in range(2):
        i(f"ds_write_b128 v2, {vr(PK(1)+4*hd,4)} offset:{hd*2048}")
        i(f"ds_write_b128 v48, {vr(PK(0)+4*hd,4)} offset:{hd*2048}")
    i(f"ds_write_b128 v3, {vr(PK(2),4)}")
    i(f"ds_write_b128 v3, {vr(PK(2)+4,4)} offset:512")
    i("s_waitcnt lgkmcnt(0)")
    i("s_branch F_P3PRE")
    i("F_LOADER:")
    i(f"""
    s_sub_u32 s21, s20, 4                   ; lw
    s_or_b32 s22, s2, s21
    s_cmp_eq_u32 s22, 0
    s_cbranch_scc0 F_NONONCE
    s_memrealtime s[22:23]
    s_waitcnt lgkmcnt(0)
    s_or_b32 s22, s22, 1
    v_mov_b32 v2, s22
    v_mov_b32 v3, 0
    s_mov_b64 exec, 1
    buffer_store_dword v2, v3, s[28:31], 0 offen {SC}
    s_mov_b64 exec, -1
    F_NONONCE:
    s_lshl_b32 s22, s48, 6
    s_lshl_b32 s23, s21, 3
    s_add_u32 s22, s22, s23
    v_lshrrev_b32 v4, 3, v0
    v_add_u32 v5, s22, v4
    v_lshlrev_b32 v5, 10, v5
    s_and_b32 s22, s21, 1
    s_lshl_b32 s22, s22, 2
    v_lshrrev_b32 v6, 4, v0
    v_add_u32 v7, s22, v6
    v_and_b32 v7, 7, v7
    v_and_b32 v8, 7, v0
    v_xor_b32 v7, v7, v8
    v_lshlrev_b32 v7, 4, v7
    v_add_u32 v3, v5, v7                    ; voff_x
    s_lshl_b32 s22, s21, 3
    v_add_u32 v5, s22, v4
    s_movk_i32 s23, 3072
    v_mul_lo_u32 v5, v5, s23
    s_lshl_b32 s22, s47, 7
    v_add_u32 v5, s22, v5
    v_lshrrev_b32 v7, 2, v8
    v_and_b32 v10, 1, v6
    v_xor_b32 v7, v7, v10
    v_lshlrev_b32 v7, 6, v7
    v_add_u32 v5, v5, v7
    v_and_b32 v7, 3, v0
    v_lshlrev_b32 v7, 4, v7
    v_add_u32 v9, v5, v7                    ; voff_w
    v_mov_b32 v10, 0
    s_lshl_b32 s57, s21, 10                 ; lw*1024
    """)
    def issue(n):
        slot = SLOTS[n % 3]
        if n == 8:
            srd(a, 8, 42, 43, 0x200000)
            srd(a, 12, 44, 45, 0x180000)
        i(f"""
        s_add_u32 s22, s49, {n % 8}
        s_and_b32 s22, s22, 7
        s_lshl_b32 s23, s22, 7
        s_mul_i32 s24, s22, {64*3072}
        """)
        for jx in range(2):
            i(f"s_add_u32 m0, s57, {slot + jx*4096}")
            i(f"s_add_u32 s25, s23, {jx*32768}")
            i(f"buffer_load_dwordx4 v3, s[8:11], s25 offen lds")
        for jj in range(6):
            ty = jj >> 1
            i(f"s_add_u32 m0, s57, {slot + 8192 + ty*8192 + (jj&1)*4096}")
            i(f"s_add_u32 s25, s24, {(jj&1)*32*3072 + ty*1024}")
            i(f"buffer_load_dwordx4 v9, s[12:15], s25 offen lds")
    issue(0); issue(1)
    stg(10)
    NKV = 16
    for n in range(16):
        if n < 15:
            extra = 0
            i(f"s_waitcnt vmcnt(8)")
        else:
            i(f"s_waitcnt vmcnt({NKV})")
        if n == 6:
            get_nonce(10)
        if n == 14:
            i(f"""
            s_cmp_eq_u32 s21, 0
            s_cbranch_scc0 F_NP14
            s_lshr_b32 s22, s50, 1
            s_lshl_b32 s22, s22, 8
            s_add_u32 s22, s22, {FL_A}
            """)
            poll("s22", 10)
            i("F_NP14:")
        if n in (0, 1, 2, 3, 4, 8, 12, 15): stg((0, 1, 2, 3, 4, 8, 12, 15).index(n) + 1)
        i("s_barrier")
        if n + 2 <= 15:
            issue(n + 2)
        if n == 4:
            nonce_issue(10)
        if n == 14:
            i(f"""
            s_lshl_b32 s22, s50, 16
            s_add_u32 s22, s22, s57
            s_add_u32 s23, s22, {WS_VA2}
            s_add_u32 s22, s22, {WS_KA}
            """)
            for n2 in (0, 1, 4, 5, 2, 3, 6, 7):
                i(f"s_add_u32 m0, s57, {KH0 + n2*4096}")
                i(f"s_add_u32 s25, s22, {n2*4096}")
                i(f"buffer_load_dwordx4 v1, s[16:19], s25 offen {SC} lds")
                i(f"s_add_u32 m0, s57, {VH0 + n2*4096}")
                i(f"s_add_u32 s25, s23, {n2*4096}")
                i(f"buffer_load_dwordx4 v1, s[16:19], s25 offen {SC} lds")
    q_loads()
    i("s_waitcnt vmcnt(0)")
    i("F_P3PRE:")
    QA, QB, KF, VA, VB, IDX = 4, 8, 12, 16, 20, 24
    CA, SX, SY, OA, CB, OB = 32, 48, 64, 80, 96, 112
    AK, AV = 2, 3
    def smf(o, v, x): return f"v_smfmac_f32_32x32x32_bf16 {vr(o,16)}, {vr(v,4)}, {vr(x,8)}, v{IDX}"
    def qk(d, q, c): return f"v_mfma_f32_32x32x16_bf16 {vr(d,16)}, {vr(KF,4)}, {vr(q,4)}, {c}"
    i("v_mov_b32 v25, v250")
    i(f"""
    s_and_b32 s58, s20, 3
    s_lshr_b32 s59, s20, 2                  ; grp
    s_lshl_b32 s60, s51, 3
    s_lshl_b32 s21, s58, 1
    s_add_u32 s60, s60, s21                 ; qtA
    s_lshl_b32 s57, s20, 10                 ; w*1024
    s_lshl_b32 s22, s50, 16
    s_add_u32 s22, s22, s57
    s_add_u32 s62, s22, {WS_KA}             ; K src + w*1024
    s_add_u32 s63, s22, {WS_VA2}            ; V src + w*1024
    v_lshrrev_b32 v26, 3, v0
    s_lshl_b32 s21, s20, 3
    v_add_u32 v26, s21, v26
    v_lshlrev_b32 v26, 10, v26
    s_lshl_b32 s21, s53, 7
    v_add_u32 v26, s21, v26
    v_and_b32 v27, 7, v0
    v_lshrrev_b32 v27, 2, v27
    v_bfe_u32 v28, v0, 4, 1
    v_xor_b32 v27, v27, v28
    v_lshlrev_b32 v27, 6, v27
    v_add_u32 v26, v26, v27
    v_and_b32 v27, 3, v0
    v_lshlrev_b32 v27, 4, v27
    v_add_u32 v29, v26, v27
    v_mov_b32 v{IDX}, 0xdddd
    """)
    srd(a, 8, 40, 41, 0x80000)
    srd(a, 12, 38, 39, 0x80000)
    preset_v(list(range(VA, VA+8)), 26)
    for r in list(range(OA, OA+9)) + list(range(OB, OB+9)) + list(range(128, 133)):
        i(f"v_mov_b32 v{r}, 0")
    def kv_dma(half, n2):
        i(f"s_add_u32 m0, s57, {(KH0, KH1)[half] + n2*8192}")
        i(f"s_add_u32 s25, s62, {half*32768 + n2*8192}")
        i(f"buffer_load_dwordx4 v1, s[16:19], s25 offen {SC} lds")
        i(f"s_add_u32 m0, s57, {(VH0, VH1)[half] + n2*8192}")
        i(f"s_add_u32 s25, s63, {half*32768 + n2*8192}")
        i(f"buffer_load_dwordx4 v1, s[16:19], s25 offen {SC} lds")
    stamp(5)
    i("s_barrier")
    stamp(6)
    i(f"""
    ds_read_b128 {vr(KF,4)}, v1 offset:{KH0}
    s_waitcnt lgkmcnt(0)
    {qk(SX, QA, 0)}
    {qk(SY, QB, 0)}
    s_nop 15
    """)
    tree_max(range(SX, SX+16), 26, 28)
    tree_max(range(SY, SY+16), 27, 30)
    xhalf_max(26, 28); xhalf_max(27, 28)
    i("v_sub_f32 v26, 0, v26\nv_sub_f32 v27, 0, v27")
    for k in range(16):
        i(f"v_mov_b32 v{CA+k}, v26")
        i(f"v_mov_b32 v{CB+k}, v27")
    i("s_mov_b32 s61, 0")
    i("F_HALF:")
    i(f"""
    s_lshl_b32 s21, s61, 16
    s_lshl_b32 s22, s59, 14
    s_add_u32 s21, s21, s22
    v_add_u32 v{AK}, s21, v1
    s_add_u32 s21, s21, {VH0}
    v_add_u32 v{AV}, s21, v25
    """)
    for k in range(8, 16):
        i(f"v_mov_b32 v{SY+k}, 0")
    i(f"""
    ds_read_b128 {vr(KF,4)}, v{AK}
    s_mov_b64 exec, s[54:55]
    ds_read_b128 {vr(VA,4)}, v{AV}
    s_mov_b64 exec, -1
    s_waitcnt lgkmcnt(1)
    {qk(SX, QA, vr(CA,16))}
    s_mov_b32 s58, 0
    s_nop 15
    F_LOOP:
    """)
    def rdv(r, off):
        i("s_mov_b64 exec, s[54:55]")
        i(f"ds_read_b128 {vr(r,4)}, v{AV} offset:{off}")
        i("s_mov_b64 exec, -1")
    UN = 4
    for u in range(UN):
        X, Y = SX, SY
        E = lambda R, k: i(f"v_exp_f32 v{R+k}, v{R+k}")
        E(X,0); E(X,1)
        i(smf(OB, VB, Y+8)); rdv(VB, u*1024 + 512)
        for k in range(2, 7): E(X,k)
        i(qk(Y, QB, vr(CB,16)))
        i(f"ds_read_b128 {vr(KF,4)}, v{AK} offset:{(u+1)*1024}")
        for k in range(7, 12): E(X,k)
        i("s_waitcnt lgkmcnt(2)")
        i(smf(OA, VA, X))
        for k in range(12, 16): E(X,k)
        E(Y,0); E(Y,1)
        i("s_waitcnt lgkmcnt(1)")
        i(smf(OA, VB, X+8))
        for k in range(2, 7): E(Y,k)
        i("s_waitcnt lgkmcnt(0)")
        i(qk(X, QA, vr(CA,16)))
        for k in range(7, 12): E(Y,k)
        i(smf(OB, VA, Y)); rdv(VA, (u+1)*1024)
        for k in range(12, 16): E(Y,k)
    i(f"""
    v_add_u32 v{AK}, {UN*1024}, v{AK}
    v_add_u32 v{AV}, {UN*1024}, v{AV}
    s_add_u32 s58, s58, 1
    s_lshl_b32 s21, s61, 2
    s_add_u32 s21, s21, s58
    s_cmp_eq_u32 s21, 1
    s_cbranch_scc1 F_J1
    s_cmp_eq_u32 s21, 2
    s_cbranch_scc1 F_J2
    s_cmp_eq_u32 s21, 3
    s_cbranch_scc1 F_J3
    s_cmp_eq_u32 s21, 5
    s_cbranch_scc1 F_J5
    s_cmp_eq_u32 s21, 6
    s_cbranch_scc1 F_J6
    s_cmp_eq_u32 s21, 7
    s_cbranch_scc1 F_J7
    F_JEND:
    s_cmp_lt_u32 s58, 4
    s_cbranch_scc1 F_LOOP
    s_waitcnt lgkmcnt(0)
    {smf(OB, VB, SY+8)}
    s_cmp_eq_u32 s61, 1
    s_cbranch_scc1 F_ATT_END
    s_waitcnt vmcnt(0)
    """)
    stamp(7)
    i("s_barrier")
    stamp(8)
    masks = lane_masks_B()
    BS0, BS1, BO, BI0, BI1 = SX, SY, 136, 152, 168
    BK0, BK1, BV0, BV1, BV2, BQ = 184, 188, 192, 196, 200, 204
    i(f"""
    s_lshr_b32 s21, s20, 1                  ; hl
    s_and_b32 s22, s20, 1                   ; tile
    s_lshl_b32 s23, s20, 10
    v_add_u32 v26, s23, v1
    v_add_u32 v27, s23, v25
    v_add_u32 v26, {SCR}, v26
    v_add_u32 v27, {SCR}, v27
    ds_read_b128 {vr(BQ,4)}, v26 offset:{BQ_LDS - SCR}
    ds_read_b128 {vr(BK1,4)}, v26 offset:{BK_LDS - SCR}
    """)
    preset_v(list(range(BV0, BV0+12)), 28)
    i(f"""
    s_mov_b64 exec, s[54:55]
    ds_read_b128 {vr(BV1,4)}, v27 offset:{BV_LDS - SCR}
    ds_read_b128 {vr(BV2,4)}, v27 offset:{BV_LDS - SCR + 512}
    s_mov_b64 exec, -1
    v_mov_b32 v31, 0xff800000
    s_cmp_eq_u32 s22, 0
    s_cbranch_scc1 F_UHALO
    v_subrev_u32 v26, 1024, v26
    v_subrev_u32 v27, 1024, v27
    ds_read_b128 {vr(BK0,4)}, v26 offset:{BK_LDS - SCR}
    s_mov_b64 exec, s[54:55]
    ds_read_b128 {vr(BV0,4)}, v27 offset:{BV_LDS - SCR + 512}
    s_mov_b64 exec, -1
    s_mov_b32 s24, -1
    s_branch F_UGO
    F_UHALO:
    s_cmp_eq_u32 s48, 0
    s_cbranch_scc0 F_UHALO2
    """)
    for k in range(4):
        i(f"v_mov_b32 v{BK0+k}, 0")
    i(f"""
    s_mov_b32 s24, 0
    s_branch F_UGO
    F_UHALO2:
    s_lshl_b32 s23, s47, 5
    s_add_u32 s23, s23, s48
    s_sub_u32 s23, s23, 1
    s_lshl_b32 s23, s23, 1
    s_lshr_b32 s24, s21, 1                  ; c = hl>>1
    s_add_u32 s23, s23, s24
    s_lshl_b32 s23, s23, 2
    s_add_u32 s23, s23, {FL_H}
    """)
    poll("s23", 26, lanemask_and=0)
    i(f"""
    s_lshl_b32 s23, s47, 2
    s_add_u32 s23, s23, s21                 ; head
    s_lshl_b32 s23, s23, 16
    s_lshl_b32 s24, s48, 1
    s_sub_u32 s24, s24, 1
    s_lshl_b32 s24, s24, 10
    s_add_u32 s23, s23, s24
    s_add_u32 s24, s23, {WS_KB}
    buffer_load_dwordx4 {vr(BK0,4)}, v1, s[16:19], s24 offen {SC}
    s_add_u32 s24, s23, {WS_VB2 + 512}
    s_mov_b64 exec, s[54:55]
    buffer_load_dwordx4 {vr(BV0,4)}, v25, s[16:19], s24 offen {SC}
    s_mov_b64 exec, -1
    s_mov_b32 s24, -1
    s_waitcnt vmcnt(0)
    F_UGO:
    """)
    for t, base in ((0, BI0), (1, BI1)):
        for k in range(8 if t == 0 else 0, 16):
            m = masks[(t, k)]
            if t == 0:
                i(f"s_and_b32 s26, s24, {m & 0xffffffff:#x}\ns_and_b32 s27, s24, {m >> 32:#x}")
            else:
                i(f"s_mov_b32 s26, {m & 0xffffffff:#x}\ns_mov_b32 s27, {m >> 32:#x}")
            i(f"v_cndmask_b32 v{base+k}, v31, 0, s[26:27]")
    i(f"""
    s_waitcnt lgkmcnt(0)
    s_nop 0
    v_mfma_f32_32x32x16_bf16 {vr(BS0,16)}, {vr(BK0,4)}, {vr(BQ,4)}, {vr(BI0,16)}
    v_mfma_f32_32x32x16_bf16 {vr(BS1,16)}, {vr(BK1,4)}, {vr(BQ,4)}, {vr(BI1,16)}
    """)
    for k in range(9):
        i(f"v_mov_b32 v{BO+k}, 0")
    i("s_nop 7")
    regs = [BS0 + k for k in range(8, 16)] + [BS1 + k for k in range(16)]
    tree_max(regs, 26, 27)
    xhalf_max(26, 27)
    for r in regs:
        i(f"v_sub_f32 v{r}, v{r}, v26")
    for r in regs:
        i(f"v_exp_f32 v{r}, v{r}")
    i(f"""
    s_nop 1
    {smf(BO, BV0, BS0+8)}
    {smf(BO, BV1, BS1)}
    {smf(BO, BV2, BS1+8)}
    s_lshl_b32 s23, s48, 1
    s_add_u32 s23, s23, s22
    s_lshl_b32 s23, s23, 5
    s_lshl_b32 s24, s47, 2
    s_add_u32 s24, s24, s21                 ; head
    s_add_u32 s6, s23, s24
    s_lshl_b32 s23, s6, 10
    s_add_u32 s23, s23, {WS_OB}
    s_nop 10
    """)
    normalize(BO, 26)
    i(f"buffer_store_dwordx4 {vr(BO+8,4)}, v1, s[16:19], s23 offen {SC}")
    i("s_mov_b32 s61, 1\ns_branch F_HALF")
    i("F_J1:")
    i(f"""
    s_and_b32 s21, s20, 5
    s_cmp_eq_u32 s21, 1
    s_cbranch_scc0 F_J1B
    s_lshl_b32 s21, s47, 5
    s_add_u32 s21, s21, s48
    s_lshl_b32 s21, s21, 1
    s_lshr_b32 s22, s20, 1
    s_add_u32 s21, s21, s22
    s_lshl_b32 s21, s21, 2
    s_add_u32 s21, s21, {FL_H}
    s_waitcnt vmcnt(0)
    """)
    flag_store("s21", 30)
    i("F_J1B:")
    kv_dma(1, 0); kv_dma(1, 1)
    i("s_branch F_JEND\nF_J2:")
    kv_dma(1, 2)
    i("s_branch F_JEND\nF_J3:")
    kv_dma(1, 3)
    i("s_branch F_JEND\nF_J5:")
    i(f"""
    s_lshl_b32 s21, s6, 2
    s_add_u32 s21, s21, {FL_OB}
    s_waitcnt vmcnt(0)
    """)
    flag_store("s21", 30)
    for n2 in range(4):
        i(f"s_add_u32 m0, s57, {WOB_LDS + n2*8192}")
        i(f"s_mov_b32 s25, {n2*65536}")
        i(f"buffer_load_dwordx4 v29, s[8:11], s25 offen lds")
    i("s_branch F_JEND\nF_J6:")
    for n2 in range(4, 8):
        i(f"s_add_u32 m0, s57, {WOB_LDS + n2*8192}")
        i(f"s_mov_b32 s25, {n2*65536}")
        i(f"buffer_load_dwordx4 v29, s[8:11], s25 offen lds")
    i("s_branch F_JEND\nF_J7:")
    i(f"""
    s_cmp_eq_u32 s20, 0
    s_cbranch_scc0 F_NPOB
    s_lshl_b32 s22, s52, 8
    s_add_u32 s22, s22, {FL_OB}
    """)
    poll("s22", 30)
    i("F_NPOB:")
    P4A, P4B, P4W, P4R, P4O = 128, 129, 130, 131, 132
    i(f"""
    v_lshrrev_b32 v26, 5, v0
    v_lshlrev_b32 v26, 2, v26
    v_bfe_u32 v27, v0, 2, 2
    v_add_u32 v26, v26, v27
    v_lshlrev_b32 v26, 7, v26
    v_lshrrev_b32 v27, 1, v27
    v_lshlrev_b32 v27, 6, v27
    v_add_u32 v26, v26, v27
    v_and_b32 v27, 1, v0
    v_lshlrev_b32 v27, 5, v27
    v_add_u32 v26, v26, v27
    v_bfe_u32 v27, v0, 4, 1
    v_lshlrev_b32 v27, 4, v27
    v_add_u32 v26, v26, v27
    v_bfe_u32 v27, v0, 1, 1
    v_lshlrev_b32 v27, 3, v27
    v_add_u32 v26, v26, v27
    s_lshr_b32 s22, s20, 1
    s_lshl_b32 s22, s22, 14
    v_add_u32 v{P4A}, s22, v26
    v_xor_b32 v{P4B}, 64, v{P4A}
    s_lshl_b32 s21, s20, 13
    v_add_u32 v{P4W}, s21, v1
    s_and_b32 s21, s20, 1
    s_lshl_b32 s21, s21, 13
    s_bfe_u32 s22, s20, 0x10001
    s_lshl_b32 s22, s22, 12
    s_add_u32 s21, s21, s22
    s_lshr_b32 s22, s20, 2
    s_lshl_b32 s22, s22, 11
    s_add_u32 s21, s21, s22
    v_add_u32 v{P4R}, s21, v1
    s_lshl_b32 s21, s52, 6
    s_and_b32 s22, s20, 1
    s_lshl_b32 s22, s22, 5
    s_add_u32 s21, s21, s22
    v_and_b32 v26, 31, v0
    v_add_u32 v26, s21, v26
    v_lshlrev_b32 v26, 11, v26
    v_lshrrev_b32 v27, 5, v0
    v_lshlrev_b32 v27, 5, v27
    v_add_u32 v{P4O}, v26, v27
    s_lshl_b32 s63, s53, 7
    s_bfe_u32 s22, s20, 0x10001
    s_lshl_b32 s22, s22, 6
    s_add_u32 s63, s63, s22
    s_lshr_b32 s22, s20, 2
    s_lshl_b32 s22, s22, 4
    s_add_u32 s63, s63, s22
    s_and_b32 s21, s20, 1
    s_lshr_b32 s22, s20, 1
    s_lshl_b32 s23, s52, 1
    s_add_u32 s23, s23, s21
    s_lshl_b32 s23, s23, 15
    s_lshl_b32 s24, s22, 13
    s_add_u32 s62, s23, s24
    s_branch F_JEND
    """)
    i("F_ATT_END:")
    stamp(9)
    OF = 136
    i(f"""
    s_mul_i32 s21, s20, 2304
    s_add_u32 s21, s21, {SCR}
    v_lshlrev_b32 v27, 2, v0
    v_add_u32 v26, s21, v27
    s_xor_b32 s22, s20, 4
    s_mul_i32 s22, s22, 2304
    s_add_u32 s22, s22, {SCR}
    v_add_u32 v27, s22, v27
    s_nop 7
    s_cmp_eq_u32 s59, 0
    s_cbranch_scc1 F_G0
    """)
    for k in range(9):
        i(f"ds_write_b32 v26, v{OA+k} offset:{k*256}")
    i("s_waitcnt lgkmcnt(0)")
    for k in range(9):
        i(f"v_mov_b32 v{OA+k}, v{OB+k}")
    i("s_branch F_G1\nF_G0:")
    for k in range(9):
        i(f"ds_write_b32 v26, v{OB+k} offset:{k*256}")
    i("F_G1:")
    i("s_waitcnt vmcnt(0) lgkmcnt(0)\ns_barrier")
    for k in range(9):
        i(f"ds_read_b32 v{OB+k}, v27 offset:{k*256}")
    i(f"""
    s_add_u32 s60, s60, s59
    s_lshl_b32 s21, s60, 5
    s_add_u32 s21, s21, s50
    s_lshl_b32 s21, s21, 10
    s_add_u32 s61, s21, {WS_OA}
    s_waitcnt lgkmcnt(0)
    """)
    for k in range(9):
        i(f"v_add_f32 v{OA+k}, v{OA+k}, v{OB+k}")
    i(f"""
    v_mov_b32 v26, v{OA+8}
    v_mov_b32 v27, v{OA+8}
    v_and_b32 v28, 0x7fffffff, v{OA}
    v_and_b32 v30, 0x7fffffff, v{OA+1}
    v_permlane32_swap_b32 v26, v27
    v_max_u32 v28, v28, v30
    """)
    for k in range(2, 8):
        i(f"v_and_b32 v30, 0x7fffffff, v{OA+k}")
        i(f"v_max_u32 v28, v28, v30")
    i(f"""
    v_and_b32 v30, 0x7fffffff, v26
    v_max_u32 v28, v28, v30
    v_mov_b32 v30, 0x7b800000
    v_cmp_le_u32 vcc, v30, v28
    s_nop 4
    s_cbranch_vccnz F_FALLBACK
    F_FB_RET:
    """)
    normalize(OA, 26)
    i(f"buffer_store_dwordx4 {vr(OA+8,4)}, v1, s[16:19], s61 offen {SC}")
    i(f"s_add_u32 s21, s62, {WS_OB}")
    for k in range(8):
        if k == 4: i("s_add_u32 s21, s21, 4096")
        i(f"buffer_load_dwordx4 {vr(OF+4*k,4)}, v1, s[16:19], s21 offen offset:{(k%4)*1024} {SC}")
    ACC4 = 32
    WF4 = 64
    def wreads():
        for k in range(8):
            for ft in range(2):
                for rd in range(2):
                    i(f"ds_read_b64_tr_b16 {vr(WF4+8*k+4*ft+2*rd,2)}, v{(P4A,P4B)[ft]} offset:{(16*k+8*rd)*128}")
    wreads()
    for n2 in range(8):
        i(f"s_add_u32 m0, s57, {WOA_LDS + n2*8192}")
        i(f"s_mov_b32 s25, {n2*65536}")
        i(f"buffer_load_dwordx4 v29, s[12:15], s25 offen lds")
    i(f"""
    s_lshl_b32 s21, s60, 7
    s_lshl_b32 s22, s50, 2
    s_add_u32 s21, s21, s22
    s_add_u32 s21, s21, {FL_OA}
    s_waitcnt vmcnt(16)
    """)
    flag_store("s21", 30)
    stamp(10)
    srd(a, 24, 36, 37, 0x400000)
    def proj(br):
        i("s_waitcnt lgkmcnt(0)")
        for k in range(8):
            for ft in range(2):
                c = "0" if k == 0 else vr(ACC4+16*ft,16)
                i(f"v_mfma_f32_32x32x16_bf16 {vr(ACC4+16*ft,16)}, {vr(WF4+8*k+4*ft,4)}, {vr(OF+4*k,4)}, {c}")
        if br == 1:
            i("s_barrier")
        i("s_nop 15")
        for ft in range(2):
            for q in range(4):
                i(f"ds_write_b128 v{P4W}, {vr(ACC4+16*ft+4*q,4)} offset:{ft*4096+q*1024}")
        i("s_waitcnt lgkmcnt(0)\ns_barrier")
        for kq in range(4):
            for q in range(2):
                i(f"ds_read_b128 {vr(ACC4+8*kq+4*q,4)}, v{P4R} offset:{kq*16384+q*1024}")
        i("s_waitcnt lgkmcnt(0)")
        for k in range(8):
            i(f"v_add_f32 v{ACC4+k}, v{ACC4+k}, v{ACC4+8+k}")
            i(f"v_add_f32 v{ACC4+16+k}, v{ACC4+16+k}, v{ACC4+24+k}")
        for k in range(8):
            i(f"v_add_f32 v{ACC4+k}, v{ACC4+k}, v{ACC4+16+k}")
        for k in range(4):
            i(f"v_cvt_pk_bf16_f32 v{12+k}, v{ACC4+2*k}, v{ACC4+2*k+1}")
        i(f"s_add_u32 s21, s63, {br*1024}")
        i(f"buffer_store_dwordx4 v[12:15], v{P4O}, s[24:27], s21 offen")
    i("s_waitcnt vmcnt(9)")
    proj(1)
    stamp(11)
    i(f"""
    s_cmp_eq_u32 s20, 0
    s_cbranch_scc0 F_NPOA
    s_lshl_b32 s22, s52, 8
    s_add_u32 s22, s22, {FL_OA}
    """)
    poll("s22", 30)
    i("F_NPOA:")
    i("s_waitcnt vmcnt(0)\ns_barrier")
    stamp(12)
    i(f"s_add_u32 s21, s62, {WS_OA}")
    for k in range(8):
        if k == 4: i("s_add_u32 s21, s21, 4096")
        i(f"buffer_load_dwordx4 {vr(OF+4*k,4)}, v1, s[16:19], s21 offen offset:{(k%4)*1024} {SC}")
    i(f"v_add_u32 v{P4A}, {WOA_LDS}, v{P4A}\nv_add_u32 v{P4B}, {WOA_LDS}, v{P4B}")
    wreads()
    i("s_waitcnt vmcnt(0)")
    proj(0)
    stamp(13); stamp(14, real=True)
    if STAMP:
        i(f"""
        s_mov_b32 s24, s32
        s_and_b32 s25, s33, 0xffff
        s_mov_b32 s26, 0x4000000
        s_mov_b32 s27, 0x00020000
        s_lshl_b32 s21, s2, 3
        s_add_u32 s21, s21, s20
        s_lshl_b32 s21, s21, 6
        s_add_u32 s21, s21, {STAMP_OFF}
        s_waitcnt lgkmcnt(0)
        s_mov_b64 exec, 1
        """)
        for k in range(16):
            i(f"v_mov_b32 v2, s{64+2*k}\nv_mov_b32 v3, {4*k}\nbuffer_store_dword v2, v3, s[24:27], s21 offen")
        i("s_mov_b64 exec, -1")
    i("s_endpgm")
    i(f"""
    F_FALLBACK:
    s_lshl_b32 s21, s50, 16
    s_lshl_b32 s22, s60, 10
    s_add_u32 s22, s22, s21
    s_add_u32 s22, s22, {WS_QA}
    buffer_load_dwordx4 {vr(QA,4)}, v1, s[16:19], s22 offen {SC}
    s_add_u32 s23, s21, {WS_KA}
    s_add_u32 s24, s21, {WS_VA2}
    v_mov_b32 v26, 0xff800000
    s_mov_b32 s22, 0
    F_FB1:
    s_lshl_b32 s21, s22, 10
    s_add_u32 s21, s21, s23
    buffer_load_dwordx4 {vr(KF,4)}, v1, s[16:19], s21 offen {SC}
    s_waitcnt vmcnt(0)
    {qk(SX, QA, 0)}
    s_nop 15
    """)
    tree_max(range(SX, SX+16), 27, 28)
    i(f"""
    v_max_f32 v26, v26, v27
    s_add_u32 s22, s22, 1
    s_cmp_lt_u32 s22, 64
    s_cbranch_scc1 F_FB1
    """)
    xhalf_max(26, 27)
    i("v_sub_f32 v26, 0, v26")
    for k in range(16):
        i(f"v_mov_b32 v{CA+k}, v26")
        i(f"v_mov_b32 v{OA+k}, 0")
    i(f"""
    s_mov_b32 s22, 0
    F_FB2:
    s_lshl_b32 s21, s22, 10
    s_add_u32 s25, s21, s23
    buffer_load_dwordx4 {vr(KF,4)}, v1, s[16:19], s25 offen {SC}
    s_add_u32 s25, s21, s24
    s_mov_b64 exec, s[54:55]
    buffer_load_dwordx4 {vr(VA,4)}, v25, s[16:19], s25 offen {SC}
    buffer_load_dwordx4 {vr(VB,4)}, v25, s[16:19], s25 offen offset:512 {SC}
    s_mov_b64 exec, -1
    s_waitcnt vmcnt(0)
    {qk(SX, QA, vr(CA,16))}
    s_nop 15
    """)
    for k in range(16):
        i(f"v_exp_f32 v{SX+k}, v{SX+k}")
    i(f"""
    s_nop 1
    {smf(OA, VA, SX)}
    {smf(OA, VB, SX+8)}
    s_add_u32 s22, s22, 1
    s_cmp_lt_u32 s22, 64
    s_cbranch_scc1 F_FB2
    s_nop 15
    s_branch F_FB_RET
    F_DONE:
    s_endpgm
    """)
    return kernel_desc(name, 256, sgpr=100)
```

```python
import sys
from common import *
from fused5 import gen_fused, LDS_TOTAL
NAME = "concat_heads__mha_block__sliding_local_dilated__prompt"
HEAD = open(f"cdna_kernels/{NAME}.s.ref").read().split("; Override launch")[0]
def build():
    a = Asm()
    a(HEAD.rstrip("\n"))
    a(f"; @launch grid=(256,1,1) block=(512,1,1) lds={LDS_TOTAL}")
    a('.amdgcn_target "amdgcn-amd-amdhsa--gfx950"')
    a(".text")
    d = gen_fused(a, NAME + "_kernel")
    a('.section .rodata,"a"')
    a(d)
    return a.text()
if __name__ == "__main__":
    out = sys.argv[1] if len(sys.argv) > 1 else "fused.s"
    open(out, "w").write(build())
```

```python
from common import *
import os
STAMP = os.environ.get('STAMP','0')=='1'
OPT = os.environ.get('OPT','')

HV = 65536
KH0, VH0, KH1, VH1, SCR = 0, 32768, 65536, 98304, 131072
SLOTS = [65536, 98304, 131072]
BK_LDS, BV_LDS, BQ_LDS = SCR, SCR + 8192, SCR + 16384
WOB_LDS, WOA_LDS = 0, 65536
LDS_TOTAL = 163840
WS_VA2, WS_VB2 = WS_VA, WS_VB
FL = 0x1200000
FL_A = FL
FL_H = FL + 0x1000
FL_OA = FL + 0x2000
FL_OB = FL + 0x4000
WS_SIZE2 = 0x1210000
STAMP_OFF = 0x2000000
SPIN_MAX = 200000
ONES = 0x3f803f80

def key_of(i, h):
    return 16*(i >> 3) + 8*h + (i & 7)
def lane_masks_B():
    out = {}
    for tile in (0, 1):
        for i in range(16):
            m = 0
            for l in range(64):
                q = l & 31; h = l >> 5
                d = q - key_of(i, h) + (32 if tile == 0 else 0)
                if 0 <= d <= 14 and d % 2 == 0:
                    m |= 1 << l
            out[(tile, i)] = m
    return out

def gen_fused(a, name):
    lbl = [0]
    def label(p):
        lbl[0] += 1
        return f"{p}_{lbl[0]}"
    kernel_header(a, name)
    i = a.i
    PERM = ""
    if os.environ.get('PERM', '0') == '1':
        PERM = "s_lshr_b32 s3, s2, 3\n    s_lshl_b32 s4, s2, 5\n    s_or_b32 s2, s3, s4\n    s_and_b32 s2, s2, 255"
    SC = "sc0 sc1"
    RT = os.environ.get('RT','0')=='1'
    STG = os.environ.get('STG','0')=='1'
    def stg(k):
        if STAMP and STG:
            i(f"s_memtime s[{64+2*k}:{65+2*k}]")
    def stamp(k, real=False):
        if STAMP and STG and k not in (0, 13, 14, 15): return
        if STAMP:
            i(f"{'s_memrealtime' if (real or RT) else 's_memtime'} s[{64+2*k}:{65+2*k}]")
    i(f"""
    s_cmp_ge_u32 s2, 256
    s_cbranch_scc1 F_DONE
    {PERM}
    s_load_dwordx4 s[24:27], s[0:1], 0      ; A_x, A_w
    s_load_dwordx2 s[38:39], s[0:1], 16     ; A_wo
    s_load_dwordx2 s[42:43], s[0:1], 24     ; B_x
    s_load_dwordx2 s[44:45], s[0:1], 32     ; B_w
    s_load_dwordx2 s[40:41], s[0:1], 40     ; B_wo
    s_load_dwordx2 s[36:37], s[0:1], 48     ; out
    s_load_dwordx2 s[34:35], s[0:1], 56     ; dbg
    s_load_dwordx2 s[32:33], s[0:1], 64     ; ws
    v_lshrrev_b32 v1, 6, v0
    v_and_b32 v0, 63, v0                    ; lane
    s_and_b32 s3, s2, 7                     ; j
    v_readfirstlane_b32 s20, v1             ; wave
    s_lshr_b32 s4, s2, 3                    ; t
    s_and_b32 s5, s3, 3
    s_lshl_b32 s5, s5, 3
    s_lshr_b32 s6, s4, 2
    s_add_u32 s48, s5, s6
    s_lshr_b32 s5, s3, 2
    s_lshl_b32 s5, s5, 2
    s_and_b32 s47, s4, 3
    s_lshl_b32 s49, s47, 1
    s_add_u32 s49, s49, s6
    s_and_b32 s49, s49, 7                   ; rotation
    s_add_u32 s47, s47, s5                  ; g = 4(j>>2) + (t&3)
    s_lshl_b32 s5, s3, 2
    s_and_b32 s6, s4, 3
    s_add_u32 s50, s5, s6                   ; head = 4j + (t&3)
    s_lshr_b32 s51, s4, 2                   ; qb
    s_lshl_b32 s5, s3, 2
    s_lshr_b32 s6, s4, 3
    s_add_u32 s52, s5, s6                   ; rb64 = 4j + (t>>3)
    s_and_b32 s53, s4, 7                    ; fb
    v_lshlrev_b32 v1, 4, v0                 ; l*16
    s_mov_b32 s54, 0x0000ffff
    s_mov_b32 s55, 0x0000ffff
    s_waitcnt lgkmcnt(0)
    """)
    srd(a, 8, 24, 25, 0x200000)
    srd(a, 12, 26, 27, 0x180000)
    srd(a, 16, 32, 33, WS_SIZE2)
    i("""
    s_mov_b32 s28, s34
    s_and_b32 s29, s35, 0xffff
    s_mov_b32 s30, 256
    s_mov_b32 s31, 0x00020000
    """)
    stamp(0); stamp(15, real=True)
    i(f"""
    v_and_b32 v3, 15, v0
    v_lshlrev_b32 v3, 4, v3
    v_lshrrev_b32 v4, 5, v0
    v_lshlrev_b32 v4, 8, v4
    v_add_u32 v250, v3, v4
    s_cmp_ge_u32 s20, 4
    s_cbranch_scc1 F_LOADER
    """)
    def preset_v(regs, tmp):
        i(f"v_and_b32 v{tmp}, 31, v0\nv_cmp_eq_u32 vcc, 16, v{tmp}\nv_mov_b32 v{tmp}, {ONES:#x}\ns_nop 0")
        for r in regs:
            i(f"v_cndmask_b32 v{r}, 0, v{tmp}, vcc")
    def flag_store(soff, vt):
        i(f"""
        v_mov_b32 v{vt}, s46
        v_mov_b32 v{vt+1}, 0
        s_mov_b64 exec, 1
        buffer_store_dword v{vt}, v{vt+1}, s[16:19], {soff} offen {SC}
        s_mov_b64 exec, -1
        """)
    def poll(soff, vtmp, lanemask_and=None):
        L = label("POLL"); E = label("POLLE")
        if lanemask_and is None:
            i(f"v_lshlrev_b32 v{vtmp}, 2, v0")
        elif lanemask_and == 0:
            i(f"v_mov_b32 v{vtmp}, 0")
        else:
            i(f"v_and_b32 v{vtmp}, {lanemask_and}, v0\nv_lshlrev_b32 v{vtmp}, 2, v{vtmp}")
        i(f"s_mov_b32 s56, 0")
        i(f"{L}:")
        i(f"""
        buffer_load_dword v{vtmp+1}, v{vtmp}, s[16:19], {soff} offen {SC}
        s_add_u32 s56, s56, 1
        s_cmp_gt_u32 s56, {SPIN_MAX}
        s_cbranch_scc1 {E}
        s_waitcnt vmcnt(0)
        v_cmp_ne_u32 vcc, s46, v{vtmp+1}
        s_nop 4
        s_cbranch_vccnz {L}
        {E}:
        s_waitcnt vmcnt(0)
        """)
    def nonce_issue(vt):
        i(f"v_mov_b32 v{vt}, 0")
        i(f"buffer_load_dword v{vt+1}, v{vt}, s[28:31], 0 offen {SC}")
    def get_nonce(vt):
        L = label("NN"); E = label("NNE")
        i(f"""
        s_mov_b32 s56, 0
        {L}:
        v_readfirstlane_b32 s46, v{vt+1}
        s_cmp_lg_u32 s46, 0
        s_cbranch_scc1 {E}
        s_add_u32 s56, s56, 1
        s_cmp_gt_u32 s56, {SPIN_MAX}
        s_cbranch_scc1 {E}
        buffer_load_dword v{vt+1}, v{vt}, s[28:31], 0 offen {SC}
        s_waitcnt vmcnt(0)
        s_branch {L}
        {E}:
        """)
    def normalize(o, t):
        i(f"""
        v_mov_b32 v{t}, v{o+8}
        v_mov_b32 v{t+1}, v{o+8}
        s_nop 1
        v_permlane32_swap_b32 v{t}, v{t+1}
        s_nop 1
        v_rcp_f32 v{t}, v{t}
        s_nop 0
        """)
        for k in range(8):
            i(f"v_mul_f32 v{o+k}, v{o+k}, v{t}")
        for k in range(4):
            i(f"v_cvt_pk_bf16_f32 v{o+8+k}, v{o+2*k}, v{o+2*k+1}")
    def tree_max(regs, dst, tmp):
        regs = list(regs)
        half = (len(regs) // 2 + 1) // 3 * 3
        A, B = regs[:len(regs)//2], regs[len(regs)//2:]
        seqs = []
        for R, d in ((A, dst), (B, tmp)):
            s_ = [f"v_max3_f32 v{d}, v{R[0]}, v{R[1]}, v{R[2]}"]
            k = 3
            while k + 1 < len(R):
                s_.append(f"v_max3_f32 v{d}, v{d}, v{R[k]}, v{R[k+1]}"); k += 2
            if k < len(R): s_.append(f"v_max_f32 v{d}, v{d}, v{R[k]}")
            seqs.append(s_)
        for k in range(max(map(len, seqs))):
            for s_ in seqs:
                if k < len(s_): i(s_[k])
        i(f"v_max_f32 v{dst}, v{dst}, v{tmp}")
    def xhalf_max(r, t):
        i(f"""
        v_mov_b32 v{t}, v{r}
        s_nop 1
        v_permlane32_swap_b32 v{r}, v{t}
        s_nop 1
        v_max_f32 v{r}, v{r}, v{t}
        """)
    VX, VW = 12, 16
    ACC = 64
    def acc(ty): return ACC + 16*ty
    def xf(b): return 20 + 16*b
    def wf(b, ty): return 24 + 16*b + 4*ty
    def PK(ty): return 112 + 8*ty
    i(f"""
    s_and_b32 s58, s20, 1                   ; rt
    s_lshr_b32 s59, s20, 1                  ; c
    v_and_b32 v4, 31, v0
    v_lshrrev_b32 v5, 5, v0                 ; h
    s_lshl_b32 s21, s58, 5
    v_add_u32 v6, s21, v4
    v_lshlrev_b32 v6, 7, v6
    v_lshrrev_b32 v7, 1, v4
    v_and_b32 v7, 7, v7
    v_xor_b32 v7, v7, v5
    v_lshlrev_b32 v7, 4, v7
    v_add_u32 v6, v6, v7
    v_add_u32 v12, {SLOTS[0]}, v6
    v_xor_b32 v13, 32, v6
    v_add_u32 v13, {SLOTS[0]}, v13
    v_xor_b32 v14, 64, v6
    v_add_u32 v14, {SLOTS[0]}, v14
    v_xor_b32 v15, 0x60, v6
    v_add_u32 v15, {SLOTS[0]}, v15
    v_bfe_u32 v6, v0, 2, 2
    v_lshlrev_b32 v7, 3, v5
    v_add_u32 v7, v7, v6
    v_lshlrev_b32 v7, 7, v7
    v_lshrrev_b32 v8, 1, v6
    v_xor_b32 v8, s59, v8
    v_lshlrev_b32 v8, 6, v8
    v_add_u32 v7, v7, v8
    v_bfe_u32 v8, v0, 4, 1
    v_lshlrev_b32 v8, 5, v8
    v_add_u32 v7, v7, v8
    v_and_b32 v8, 3, v0
    v_lshlrev_b32 v8, 3, v8
    v_add_u32 v7, v7, v8
    v_add_u32 v16, {SLOTS[0] + 8192}, v7
    v_and_b32 v17, 0x33, v0
    v_bfe_u32 v18, v0, 2, 1
    v_lshlrev_b32 v18, 3, v18
    v_or_b32 v17, v17, v18
    v_bfe_u32 v18, v0, 3, 1
    v_lshlrev_b32 v18, 2, v18
    v_or_b32 v17, v17, v18
    v_lshlrev_b32 v17, 4, v17
    v_bfe_u32 v10, v0, 4, 1
    v_lshlrev_b32 v18, 16, v10
    v_add_u32 v18, v18, v250
    v_lshlrev_b32 v19, 11, v10
    v_add_u32 v19, v19, v250
    s_lshl_b32 s21, s48, 1
    s_add_u32 s60, s21, s58
    s_lshl_b32 s61, s47, 2
    s_lshl_b32 s21, s59, 1
    s_add_u32 s61, s61, s21
    s_lshl_b32 s21, s61, 16
    s_lshl_b32 s22, s60, 10
    s_add_u32 s62, s21, s22
    """)
    def rd_list(b, ks):
        L = [f"ds_read_b128 {vr(xf(b),4)}, v{VX+ks}"]
        for ty in range(3):
            for rd in range(2):
                L.append(f"ds_read_b64_tr_b16 {vr(wf(b,ty)+2*rd,2)}, v{VW} offset:{ty*8192 + (16*ks+4*rd)*128}")
        if os.environ.get('EXP2', '') == 'nords': L = ["s_nop 0"]*7
        if os.environ.get('EXP2', '') == 'notr': L = [L[0]] + ["s_nop 0"]*6
        if os.environ.get('EXP2', '') == 'nox': L = ["s_nop 0"] + L[1:]
        return L
    EXP = os.environ.get('EXP', '')
    def mf(b, ty, first):
        A, B = (wf(b,ty), xf(b)) if ty < 2 else (xf(b), wf(b,ty))
        c = "0" if first else vr(acc(ty),16)
        if EXP == 'nomfma': return "s_nop 0"
        if EXP == 'constop':
            return f"v_mfma_f32_32x32x16_bf16 {vr(acc(ty),16)}, v[200:203], v[204:207], {c}"
        if EXP == 'fixop':
            return f"v_mfma_f32_32x32x16_bf16 {vr(acc(ty),16)}, v[200:203], v[204:207], {c}"
        if EXP == 'mf16':
            return (f"v_mfma_f32_16x16x32_bf16 {vr(acc(ty),4)}, {vr(A,4)}, {vr(B,4)}, {vr(acc(ty),4)}\n"
                    f"v_mfma_f32_16x16x32_bf16 {vr(acc(ty)+4,4)}, {vr(A,4)}, {vr(B,4)}, {vr(acc(ty)+4,4)}")
        return f"v_mfma_f32_32x32x16_bf16 {vr(acc(ty),16)}, {vr(A,4)}, {vr(B,4)}, {c}"
    def bump(n):
        d = SLOTS[(n+1) % 3] - SLOTS[n % 3]
        for r in (12, 13, 14, 15, 16):
            i(f"v_add_u32 v{r}, {d}, v{r}")
    def pack(ty):
        r = acc(ty)
        if ty == 0:
            for k in range(16):
                i(f"v_mul_f32 v{r+k}, s27, v{r+k}")
        for k in range(8):
            i(f"v_cvt_pk_bf16_f32 v{PK(ty)+k}, v{r+2*k}, v{r+2*k+1}")
    def q_loads():
        i(f"""
        s_and_b32 s21, s20, 3
        s_lshl_b32 s21, s21, 1
        s_lshl_b32 s22, s51, 3
        s_add_u32 s21, s21, s22                 ; qtA
        s_lshl_b32 s21, s21, 10
        s_lshl_b32 s22, s50, 16
        s_add_u32 s21, s21, s22
        s_add_u32 s21, s21, {WS_QA}
        buffer_load_dwordx4 v[4:7], v1, s[16:19], s21 offen {SC}
        buffer_load_dwordx4 v[8:11], v1, s[16:19], s21 offen offset:1024 {SC}
        """)
    b = 0
    if EXP == 'constop':
        for r in range(200, 208): i(f"v_mov_b32 v{r}, 0")
    if EXP == 'fixop':
        for r in range(200, 208):
            i(f"v_mul_u32_u24 v{r}, {0x3c5a7*(r-199) & 0xffffff}, v0\nv_add_u32 v{r}, {0x3d2f3e71 + r*0x10203}, v{r}\nv_and_b32 v{r}, 0xbfffbfff, v{r}")
    i("s_barrier")
    stg(1)
    if STAMP and STG: i("s_memrealtime s[86:87]")
    for x in rd_list(b, 0): i(x)
    for n in range(16):
        for ks in range(4):
            first = (n % 8 == 0 and ks == 0)
            M = [mf(b, ty, first) for ty in range(3)]
            last_of_phase = (n % 8 == 7 and ks == 3)
            if ks < 3:
                R = rd_list(b ^ 1, ks + 1)
                i("s_waitcnt lgkmcnt(4)"); i(M[0]); i(R[0]); i(R[1])
                i("s_waitcnt lgkmcnt(4)"); i(M[1]); i(R[2]); i(R[3])
                i("s_waitcnt lgkmcnt(4)"); i(M[2]); i(R[4]); i(R[5]); i(R[6])
            else:
                i("s_waitcnt lgkmcnt(4)"); i(M[0])
                i("s_waitcnt lgkmcnt(2)"); i(M[1])
                i("s_waitcnt lgkmcnt(0)")
                if n < 15:
                    i("s_barrier")
                    if n in (0, 1, 2, 3, 7): stg((0, 1, 2, 3, 7).index(n) + 2)
                    if n == 5: nonce_issue(2)
                    if n == 10:
                        i(f"""
                        s_lshl_b32 s21, s61, 7
                        s_lshl_b32 s22, s60, 2
                        s_add_u32 s21, s21, s22
                        s_add_u32 s21, s21, {FL_A}
                        s_waitcnt vmcnt(0)
                        """)
                        flag_store("s21", 2)
                    if n == 14: q_loads()
                    bump(n)
                    if n != 7:
                        R = rd_list(b ^ 1, 0)
                        for x in R[:3]: i(x)
                        i(M[2])
                        for x in R[3:]: i(x)
                    else:
                        i(M[2])
                else:
                    i(M[2])
            b ^= 1
        if n == 7:
            stamp(1)
            i("s_waitcnt vmcnt(0)")
            get_nonce(2)
            i("s_mov_b32 s27, 0x3eb8aa3b\ns_nop 7")
            for ty, base, voff in ((1, WS_KA, 17), (2, WS_VA2, 18), (0, WS_QA, 1)):
                pack(ty)
                if ty < 2:
                    for hd in range(2):
                        i(f"s_add_u32 s21, s62, {base + hd*HEAD_QK}")
                        i(f"buffer_store_dwordx4 {vr(PK(ty)+4*hd,4)}, v{voff}, s[16:19], s21 offen {SC}")
                else:
                    i(f"s_add_u32 s21, s62, {base}")
                    i(f"buffer_store_dwordx4 {vr(PK(2),4)}, v18, s[16:19], s21 offen {SC}")
                    i(f"buffer_store_dwordx4 {vr(PK(2)+4,4)}, v18, s[16:19], s21 offen offset:512 {SC}")
            stamp(2)
            for x in rd_list(b, 0): i(x)
    stamp(3); stg(9)
    if STAMP and STG: i("s_memrealtime s[88:89]")
    i("s_mov_b32 s27, 0x3eb8aa3b\ns_nop 10")
    OFFB = WS_QB - WS_QA
    pack(1); pack(2)
    i("s_waitcnt vmcnt(0)")
    i("s_cmp_eq_u32 s58, 1\ns_cbranch_scc0 F_NOHALO")
    for hd in range(2):
        i(f"s_add_u32 s21, s62, {WS_KA + OFFB + hd*HEAD_QK}")
        i(f"buffer_store_dwordx4 {vr(PK(1)+4*hd,4)}, v17, s[16:19], s21 offen {SC}")
    i(f"s_add_u32 s21, s62, {WS_VA2 + OFFB}")
    i(f"buffer_store_dwordx4 {vr(PK(2),4)}, v18, s[16:19], s21 offen {SC}")
    i(f"buffer_store_dwordx4 {vr(PK(2)+4,4)}, v18, s[16:19], s21 offen offset:512 {SC}")
    i("F_NOHALO:")
    pack(0)
    i(f"""
    s_lshl_b32 s22, s59, 2
    s_add_u32 s22, s22, s58
    s_lshl_b32 s22, s22, 10                 ; (4c + rt)*1024
    v_add_u32 v2, s22, v17
    v_add_u32 v3, s22, v19
    v_add_u32 v48, s22, v1
    v_add_u32 v2, {BK_LDS}, v2
    v_add_u32 v3, {BV_LDS}, v3
    v_add_u32 v48, {BQ_LDS}, v48
    """)
    for hd in range(2):
        i(f"ds_write_b128 v2, {vr(PK(1)+4*hd,4)} offset:{hd*2048}")
        i(f"ds_write_b128 v48, {vr(PK(0)+4*hd,4)} offset:{hd*2048}")
    i(f"ds_write_b128 v3, {vr(PK(2),4)}")
    i(f"ds_write_b128 v3, {vr(PK(2)+4,4)} offset:512")
    i("s_waitcnt lgkmcnt(0)")
    i("s_branch F_P3PRE")
    i("F_LOADER:")
    i(f"""
    s_sub_u32 s21, s20, 4                   ; lw
    s_or_b32 s22, s2, s21
    s_cmp_eq_u32 s22, 0
    s_cbranch_scc0 F_NONONCE
    s_memrealtime s[22:23]
    s_waitcnt lgkmcnt(0)
    s_or_b32 s22, s22, 1
    v_mov_b32 v2, s22
    v_mov_b32 v3, 0
    s_mov_b64 exec, 1
    buffer_store_dword v2, v3, s[28:31], 0 offen {SC}
    s_mov_b64 exec, -1
    F_NONONCE:
    s_lshl_b32 s22, s48, 6
    s_lshl_b32 s23, s21, 3
    s_add_u32 s22, s22, s23
    v_lshrrev_b32 v4, 3, v0
    v_add_u32 v5, s22, v4
    v_lshlrev_b32 v5, 10, v5
    s_and_b32 s22, s21, 1
    s_lshl_b32 s22, s22, 2
    v_lshrrev_b32 v6, 4, v0
    v_add_u32 v7, s22, v6
    v_and_b32 v7, 7, v7
    v_and_b32 v8, 7, v0
    v_xor_b32 v7, v7, v8
    v_lshlrev_b32 v7, 4, v7
    v_add_u32 v3, v5, v7                    ; voff_x
    s_lshl_b32 s22, s21, 3
    v_add_u32 v5, s22, v4
    s_movk_i32 s23, 3072
    v_mul_lo_u32 v5, v5, s23
    s_lshl_b32 s22, s47, 7
    v_add_u32 v5, s22, v5
    v_lshrrev_b32 v7, 2, v8
    v_and_b32 v10, 1, v6
    v_xor_b32 v7, v7, v10
    v_lshlrev_b32 v7, 6, v7
    v_add_u32 v5, v5, v7
    v_and_b32 v7, 3, v0
    v_lshlrev_b32 v7, 4, v7
    v_add_u32 v9, v5, v7                    ; voff_w
    v_mov_b32 v10, 0
    s_lshl_b32 s57, s21, 10                 ; lw*1024
    """)
    def issue(n):
        slot = SLOTS[n % 3]
        if n == 8:
            srd(a, 8, 42, 43, 0x200000)
            srd(a, 12, 44, 45, 0x180000)
        i(f"""
        s_add_u32 s22, s49, {n % 8}
        s_and_b32 s22, s22, 7
        s_lshl_b32 s23, s22, 7
        s_mul_i32 s24, s22, {64*3072}
        """)
        for jx in range(2):
            i(f"s_add_u32 m0, s57, {slot + jx*4096}")
            i(f"s_add_u32 s25, s23, {jx*32768}")
            i(f"buffer_load_dwordx4 v3, s[8:11], s25 offen lds")
        for jj in range(6):
            ty = jj >> 1
            i(f"s_add_u32 m0, s57, {slot + 8192 + ty*8192 + (jj&1)*4096}")
            i(f"s_add_u32 s25, s24, {(jj&1)*32*3072 + ty*1024}")
            i(f"buffer_load_dwordx4 v9, s[12:15], s25 offen lds")
    issue(0); issue(1)
    stg(10)
    NKV = 16
    for n in range(16):
        if n < 15:
            extra = 0
            i(f"s_waitcnt vmcnt(8)")
        else:
            i(f"s_waitcnt vmcnt({NKV})")
        if n == 6:
            get_nonce(10)
        if n == 14:
            i(f"""
            s_cmp_eq_u32 s21, 0
            s_cbranch_scc0 F_NP14
            s_lshr_b32 s22, s50, 1
            s_lshl_b32 s22, s22, 8
            s_add_u32 s22, s22, {FL_A}
            """)
            poll("s22", 10)
            i("F_NP14:")
        if n in (0, 1, 2, 3, 4, 8, 12, 15): stg((0, 1, 2, 3, 4, 8, 12, 15).index(n) + 1)
        i("s_barrier")
        if n + 2 <= 15:
            issue(n + 2)
        if n == 4:
            nonce_issue(10)
        if n == 14:
            i(f"""
            s_lshl_b32 s22, s50, 16
            s_add_u32 s22, s22, s57
            s_add_u32 s23, s22, {WS_VA2}
            s_add_u32 s22, s22, {WS_KA}
            """)
            for n2 in (0, 1, 4, 5, 2, 3, 6, 7):
                i(f"s_add_u32 m0, s57, {KH0 + n2*4096}")
                i(f"s_add_u32 s25, s22, {n2*4096}")
                i(f"buffer_load_dwordx4 v1, s[16:19], s25 offen {SC} lds")
                i(f"s_add_u32 m0, s57, {VH0 + n2*4096}")
                i(f"s_add_u32 s25, s23, {n2*4096}")
                i(f"buffer_load_dwordx4 v1, s[16:19], s25 offen {SC} lds")
    q_loads()
    i("s_waitcnt vmcnt(0)")
    i("F_P3PRE:")
    QA, QB, KF, VA, VB, IDX = 4, 8, 12, 16, 20, 24
    CA, SX, SY, OA, CB, OB = 32, 48, 64, 80, 96, 112
    AK, AV = 2, 3
    def smf(o, v, x): return f"v_smfmac_f32_32x32x32_bf16 {vr(o,16)}, {vr(v,4)}, {vr(x,8)}, v{IDX}"
    def qk(d, q, c): return f"v_mfma_f32_32x32x16_bf16 {vr(d,16)}, {vr(KF,4)}, {vr(q,4)}, {c}"
    i("v_mov_b32 v25, v250")
    i(f"""
    s_and_b32 s58, s20, 3
    s_lshr_b32 s59, s20, 2                  ; grp
    s_lshl_b32 s60, s51, 3
    s_lshl_b32 s21, s58, 1
    s_add_u32 s60, s60, s21                 ; qtA
    s_lshl_b32 s57, s20, 10                 ; w*1024
    s_lshl_b32 s22, s50, 16
    s_add_u32 s22, s22, s57
    s_add_u32 s62, s22, {WS_KA}             ; K src + w*1024
    s_add_u32 s63, s22, {WS_VA2}            ; V src + w*1024
    v_lshrrev_b32 v26, 3, v0
    s_lshl_b32 s21, s20, 3
    v_add_u32 v26, s21, v26
    v_lshlrev_b32 v26, 10, v26
    s_lshl_b32 s21, s53, 7
    v_add_u32 v26, s21, v26
    v_and_b32 v27, 7, v0
    v_lshrrev_b32 v27, 2, v27
    v_bfe_u32 v28, v0, 4, 1
    v_xor_b32 v27, v27, v28
    v_lshlrev_b32 v27, 6, v27
    v_add_u32 v26, v26, v27
    v_and_b32 v27, 3, v0
    v_lshlrev_b32 v27, 4, v27
    v_add_u32 v29, v26, v27
    v_mov_b32 v{IDX}, 0xdddd
    """)
    srd(a, 8, 40, 41, 0x80000)
    srd(a, 12, 38, 39, 0x80000)
    preset_v(list(range(VA, VA+8)), 26)
    for r in list(range(OA, OA+9)) + list(range(OB, OB+9)) + list(range(128, 133)):
        i(f"v_mov_b32 v{r}, 0")
    def kv_dma(half, n2):
        i(f"s_add_u32 m0, s57, {(KH0, KH1)[half] + n2*8192}")
        i(f"s_add_u32 s25, s62, {half*32768 + n2*8192}")
        i(f"buffer_load_dwordx4 v1, s[16:19], s25 offen {SC} lds")
        i(f"s_add_u32 m0, s57, {(VH0, VH1)[half] + n2*8192}")
        i(f"s_add_u32 s25, s63, {half*32768 + n2*8192}")
        i(f"buffer_load_dwordx4 v1, s[16:19], s25 offen {SC} lds")
    stamp(5)
    i("s_barrier")
    stamp(6)
    i(f"""
    ds_read_b128 {vr(KF,4)}, v1 offset:{KH0}
    s_waitcnt lgkmcnt(0)
    {qk(SX, QA, 0)}
    {qk(SY, QB, 0)}
    s_nop 15
    """)
    tree_max(range(SX, SX+16), 26, 28)
    tree_max(range(SY, SY+16), 27, 30)
    xhalf_max(26, 28); xhalf_max(27, 28)
    i("v_sub_f32 v26, 0, v26\nv_sub_f32 v27, 0, v27")
    for k in range(16):
        i(f"v_mov_b32 v{CA+k}, v26")
        i(f"v_mov_b32 v{CB+k}, v27")
    i("s_mov_b32 s61, 0")
    i("F_HALF:")
    i(f"""
    s_lshl_b32 s21, s61, 16
    s_lshl_b32 s22, s59, 14
    s_add_u32 s21, s21, s22
    v_add_u32 v{AK}, s21, v1
    s_add_u32 s21, s21, {VH0}
    v_add_u32 v{AV}, s21, v25
    """)
    for k in range(8, 16):
        i(f"v_mov_b32 v{SY+k}, 0")
    i(f"""
    ds_read_b128 {vr(KF,4)}, v{AK}
    s_mov_b64 exec, s[54:55]
    ds_read_b128 {vr(VA,4)}, v{AV}
    s_mov_b64 exec, -1
    s_waitcnt lgkmcnt(1)
    {qk(SX, QA, vr(CA,16))}
    s_mov_b32 s58, 0
    s_nop 15
    F_LOOP:
    """)
    def rdv(r, off):
        i("s_mov_b64 exec, s[54:55]")
        i(f"ds_read_b128 {vr(r,4)}, v{AV} offset:{off}")
        i("s_mov_b64 exec, -1")
    UN = 4
    for u in range(UN):
        X, Y = SX, SY
        E = lambda R, k: i(f"v_exp_f32 v{R+k}, v{R+k}")
        E(X,0); E(X,1)
        i(smf(OB, VB, Y+8)); rdv(VB, u*1024 + 512)
        for k in range(2, 7): E(X,k)
        i(qk(Y, QB, vr(CB,16)))
        i(f"ds_read_b128 {vr(KF,4)}, v{AK} offset:{(u+1)*1024}")
        for k in range(7, 12): E(X,k)
        i("s_waitcnt lgkmcnt(2)")
        i(smf(OA, VA, X))
        for k in range(12, 16): E(X,k)
        E(Y,0); E(Y,1)
        i("s_waitcnt lgkmcnt(1)")
        i(smf(OA, VB, X+8))
        for k in range(2, 7): E(Y,k)
        i("s_waitcnt lgkmcnt(0)")
        i(qk(X, QA, vr(CA,16)))
        for k in range(7, 12): E(Y,k)
        i(smf(OB, VA, Y)); rdv(VA, (u+1)*1024)
        for k in range(12, 16): E(Y,k)
    i(f"""
    v_add_u32 v{AK}, {UN*1024}, v{AK}
    v_add_u32 v{AV}, {UN*1024}, v{AV}
    s_add_u32 s58, s58, 1
    s_lshl_b32 s21, s61, 2
    s_add_u32 s21, s21, s58
    s_cmp_eq_u32 s21, 1
    s_cbranch_scc1 F_J1
    s_cmp_eq_u32 s21, 2
    s_cbranch_scc1 F_J2
    s_cmp_eq_u32 s21, 3
    s_cbranch_scc1 F_J3
    s_cmp_eq_u32 s21, 5
    s_cbranch_scc1 F_J5
    s_cmp_eq_u32 s21, 6
    s_cbranch_scc1 F_J6
    s_cmp_eq_u32 s21, 7
    s_cbranch_scc1 F_J7
    F_JEND:
    s_cmp_lt_u32 s58, 4
    s_cbranch_scc1 F_LOOP
    s_waitcnt lgkmcnt(0)
    {smf(OB, VB, SY+8)}
    s_cmp_eq_u32 s61, 1
    s_cbranch_scc1 F_ATT_END
    s_waitcnt vmcnt(0)
    """)
    stamp(7)
    i("s_barrier")
    stamp(8)
    masks = lane_masks_B()
    BS0, BS1, BO, BI0, BI1 = SX, SY, 136, 152, 168
    BK0, BK1, BV0, BV1, BV2, BQ = 184, 188, 192, 196, 200, 204
    i(f"""
    s_lshr_b32 s21, s20, 1                  ; hl
    s_and_b32 s22, s20, 1                   ; tile
    s_lshl_b32 s23, s20, 10
    v_add_u32 v26, s23, v1
    v_add_u32 v27, s23, v25
    v_add_u32 v26, {SCR}, v26
    v_add_u32 v27, {SCR}, v27
    ds_read_b128 {vr(BQ,4)}, v26 offset:{BQ_LDS - SCR}
    ds_read_b128 {vr(BK1,4)}, v26 offset:{BK_LDS - SCR}
    """)
    preset_v(list(range(BV0, BV0+12)), 28)
    i(f"""
    s_mov_b64 exec, s[54:55]
    ds_read_b128 {vr(BV1,4)}, v27 offset:{BV_LDS - SCR}
    ds_read_b128 {vr(BV2,4)}, v27 offset:{BV_LDS - SCR + 512}
    s_mov_b64 exec, -1
    v_mov_b32 v31, 0xff800000
    s_cmp_eq_u32 s22, 0
    s_cbranch_scc1 F_UHALO
    v_subrev_u32 v26, 1024, v26
    v_subrev_u32 v27, 1024, v27
    ds_read_b128 {vr(BK0,4)}, v26 offset:{BK_LDS - SCR}
    s_mov_b64 exec, s[54:55]
    ds_read_b128 {vr(BV0,4)}, v27 offset:{BV_LDS - SCR + 512}
    s_mov_b64 exec, -1
    s_mov_b32 s24, -1
    s_branch F_UGO
    F_UHALO:
    s_cmp_eq_u32 s48, 0
    s_cbranch_scc0 F_UHALO2
    """)
    for k in range(4):
        i(f"v_mov_b32 v{BK0+k}, 0")
    i(f"""
    s_mov_b32 s24, 0
    s_branch F_UGO
    F_UHALO2:
    s_lshl_b32 s23, s47, 5
    s_add_u32 s23, s23, s48
    s_sub_u32 s23, s23, 1
    s_lshl_b32 s23, s23, 1
    s_lshr_b32 s24, s21, 1                  ; c = hl>>1
    s_add_u32 s23, s23, s24
    s_lshl_b32 s23, s23, 2
    s_add_u32 s23, s23, {FL_H}
    """)
    poll("s23", 26, lanemask_and=0)
    i(f"""
    s_lshl_b32 s23, s47, 2
    s_add_u32 s23, s23, s21                 ; head
    s_lshl_b32 s23, s23, 16
    s_lshl_b32 s24, s48, 1
    s_sub_u32 s24, s24, 1
    s_lshl_b32 s24, s24, 10
    s_add_u32 s23, s23, s24
    s_add_u32 s24, s23, {WS_KB}
    buffer_load_dwordx4 {vr(BK0,4)}, v1, s[16:19], s24 offen {SC}
    s_add_u32 s24, s23, {WS_VB2 + 512}
    s_mov_b64 exec, s[54:55]
    buffer_load_dwordx4 {vr(BV0,4)}, v25, s[16:19], s24 offen {SC}
    s_mov_b64 exec, -1
    s_mov_b32 s24, -1
    s_waitcnt vmcnt(0)
    F_UGO:
    """)
    for t, base in ((0, BI0), (1, BI1)):
        for k in range(8 if t == 0 else 0, 16):
            m = masks[(t, k)]
            if t == 0:
                i(f"s_and_b32 s26, s24, {m & 0xffffffff:#x}\ns_and_b32 s27, s24, {m >> 32:#x}")
            else:
                i(f"s_mov_b32 s26, {m & 0xffffffff:#x}\ns_mov_b32 s27, {m >> 32:#x}")
            i(f"v_cndmask_b32 v{base+k}, v31, 0, s[26:27]")
    i(f"""
    s_waitcnt lgkmcnt(0)
    s_nop 0
    v_mfma_f32_32x32x16_bf16 {vr(BS0,16)}, {vr(BK0,4)}, {vr(BQ,4)}, {vr(BI0,16)}
    v_mfma_f32_32x32x16_bf16 {vr(BS1,16)}, {vr(BK1,4)}, {vr(BQ,4)}, {vr(BI1,16)}
    """)
    for k in range(9):
        i(f"v_mov_b32 v{BO+k}, 0")
    i("s_nop 7")
    regs = [BS0 + k for k in range(8, 16)] + [BS1 + k for k in range(16)]
    tree_max(regs, 26, 27)
    xhalf_max(26, 27)
    for r in regs:
        i(f"v_sub_f32 v{r}, v{r}, v26")
    for r in regs:
        i(f"v_exp_f32 v{r}, v{r}")
    i(f"""
    s_nop 1
    {smf(BO, BV0, BS0+8)}
    {smf(BO, BV1, BS1)}
    {smf(BO, BV2, BS1+8)}
    s_lshl_b32 s23, s48, 1
    s_add_u32 s23, s23, s22
    s_lshl_b32 s23, s23, 5
    s_lshl_b32 s24, s47, 2
    s_add_u32 s24, s24, s21                 ; head
    s_add_u32 s6, s23, s24
    s_lshl_b32 s23, s6, 10
    s_add_u32 s23, s23, {WS_OB}
    s_nop 10
    """)
    normalize(BO, 26)
    i(f"buffer_store_dwordx4 {vr(BO+8,4)}, v1, s[16:19], s23 offen {SC}")
    i("s_mov_b32 s61, 1\ns_branch F_HALF")
    i("F_J1:")
    i(f"""
    s_and_b32 s21, s20, 5
    s_cmp_eq_u32 s21, 1
    s_cbranch_scc0 F_J1B
    s_lshl_b32 s21, s47, 5
    s_add_u32 s21, s21, s48
    s_lshl_b32 s21, s21, 1
    s_lshr_b32 s22, s20, 1
    s_add_u32 s21, s21, s22
    s_lshl_b32 s21, s21, 2
    s_add_u32 s21, s21, {FL_H}
    s_waitcnt vmcnt(0)
    """)
    flag_store("s21", 30)
    i("F_J1B:")
    kv_dma(1, 0); kv_dma(1, 1)
    i("s_branch F_JEND\nF_J2:")
    kv_dma(1, 2)
    i("s_branch F_JEND\nF_J3:")
    kv_dma(1, 3)
    i("s_branch F_JEND\nF_J5:")
    i(f"""
    s_lshl_b32 s21, s6, 2
    s_add_u32 s21, s21, {FL_OB}
    s_waitcnt vmcnt(0)
    """)
    flag_store("s21", 30)
    for n2 in range(4):
        i(f"s_add_u32 m0, s57, {WOB_LDS + n2*8192}")
        i(f"s_mov_b32 s25, {n2*65536}")
        i(f"buffer_load_dwordx4 v29, s[8:11], s25 offen lds")
    i("s_branch F_JEND\nF_J6:")
    for n2 in range(4, 8):
        i(f"s_add_u32 m0, s57, {WOB_LDS + n2*8192}")
        i(f"s_mov_b32 s25, {n2*65536}")
        i(f"buffer_load_dwordx4 v29, s[8:11], s25 offen lds")
    i("s_branch F_JEND\nF_J7:")
    i(f"""
    s_cmp_eq_u32 s20, 0
    s_cbranch_scc0 F_NPOB
    s_lshl_b32 s22, s52, 8
    s_add_u32 s22, s22, {FL_OB}
    """)
    poll("s22", 30)
    i("F_NPOB:")
    P4A, P4B, P4W, P4R, P4O = 128, 129, 130, 131, 132
    i(f"""
    v_lshrrev_b32 v26, 5, v0
    v_lshlrev_b32 v26, 2, v26
    v_bfe_u32 v27, v0, 2, 2
    v_add_u32 v26, v26, v27
    v_lshlrev_b32 v26, 7, v26
    v_lshrrev_b32 v27, 1, v27
    v_lshlrev_b32 v27, 6, v27
    v_add_u32 v26, v26, v27
    v_and_b32 v27, 1, v0
    v_lshlrev_b32 v27, 5, v27
    v_add_u32 v26, v26, v27
    v_bfe_u32 v27, v0, 4, 1
    v_lshlrev_b32 v27, 4, v27
    v_add_u32 v26, v26, v27
    v_bfe_u32 v27, v0, 1, 1
    v_lshlrev_b32 v27, 3, v27
    v_add_u32 v26, v26, v27
    s_lshr_b32 s22, s20, 1
    s_lshl_b32 s22, s22, 14
    v_add_u32 v{P4A}, s22, v26
    v_xor_b32 v{P4B}, 64, v{P4A}
    s_lshl_b32 s21, s20, 13
    v_add_u32 v{P4W}, s21, v1
    s_and_b32 s21, s20, 1
    s_lshl_b32 s21, s21, 13
    s_bfe_u32 s22, s20, 0x10001
    s_lshl_b32 s22, s22, 12
    s_add_u32 s21, s21, s22
    s_lshr_b32 s22, s20, 2
    s_lshl_b32 s22, s22, 11
    s_add_u32 s21, s21, s22
    v_add_u32 v{P4R}, s21, v1
    s_lshl_b32 s21, s52, 6
    s_and_b32 s22, s20, 1
    s_lshl_b32 s22, s22, 5
    s_add_u32 s21, s21, s22
    v_and_b32 v26, 31, v0
    v_add_u32 v26, s21, v26
    v_lshlrev_b32 v26, 11, v26
    v_lshrrev_b32 v27, 5, v0
    v_lshlrev_b32 v27, 5, v27
    v_add_u32 v{P4O}, v26, v27
    s_lshl_b32 s63, s53, 7
    s_bfe_u32 s22, s20, 0x10001
    s_lshl_b32 s22, s22, 6
    s_add_u32 s63, s63, s22
    s_lshr_b32 s22, s20, 2
    s_lshl_b32 s22, s22, 4
    s_add_u32 s63, s63, s22
    s_and_b32 s21, s20, 1
    s_lshr_b32 s22, s20, 1
    s_lshl_b32 s23, s52, 1
    s_add_u32 s23, s23, s21
    s_lshl_b32 s23, s23, 15
    s_lshl_b32 s24, s22, 13
    s_add_u32 s62, s23, s24
    s_branch F_JEND
    """)
    i("F_ATT_END:")
    stamp(9)
    OF = 136
    i(f"""
    s_mul_i32 s21, s20, 2304
    s_add_u32 s21, s21, {SCR}
    v_lshlrev_b32 v27, 2, v0
    v_add_u32 v26, s21, v27
    s_xor_b32 s22, s20, 4
    s_mul_i32 s22, s22, 2304
    s_add_u32 s22, s22, {SCR}
    v_add_u32 v27, s22, v27
    s_nop 7
    s_cmp_eq_u32 s59, 0
    s_cbranch_scc1 F_G0
    """)
    for k in range(9):
        i(f"ds_write_b32 v26, v{OA+k} offset:{k*256}")
    i("s_waitcnt lgkmcnt(0)")
    for k in range(9):
        i(f"v_mov_b32 v{OA+k}, v{OB+k}")
    i("s_branch F_G1\nF_G0:")
    for k in range(9):
        i(f"ds_write_b32 v26, v{OB+k} offset:{k*256}")
    i("F_G1:")
    i("s_waitcnt vmcnt(0) lgkmcnt(0)\ns_barrier")
    for k in range(9):
        i(f"ds_read_b32 v{OB+k}, v27 offset:{k*256}")
    i(f"""
    s_add_u32 s60, s60, s59
    s_lshl_b32 s21, s60, 5
    s_add_u32 s21, s21, s50
    s_lshl_b32 s21, s21, 10
    s_add_u32 s61, s21, {WS_OA}
    s_waitcnt lgkmcnt(0)
    """)
    for k in range(9):
        i(f"v_add_f32 v{OA+k}, v{OA+k}, v{OB+k}")
    i(f"""
    v_mov_b32 v26, v{OA+8}
    v_mov_b32 v27, v{OA+8}
    v_and_b32 v28, 0x7fffffff, v{OA}
    v_and_b32 v30, 0x7fffffff, v{OA+1}
    v_permlane32_swap_b32 v26, v27
    v_max_u32 v28, v28, v30
    """)
    for k in range(2, 8):
        i(f"v_and_b32 v30, 0x7fffffff, v{OA+k}")
        i(f"v_max_u32 v28, v28, v30")
    i(f"""
    v_and_b32 v30, 0x7fffffff, v26
    v_max_u32 v28, v28, v30
    v_mov_b32 v30, 0x7b800000
    v_cmp_le_u32 vcc, v30, v28
    s_nop 4
    s_cbranch_vccnz F_FALLBACK
    F_FB_RET:
    """)
    normalize(OA, 26)
    i(f"buffer_store_dwordx4 {vr(OA+8,4)}, v1, s[16:19], s61 offen {SC}")
    i(f"s_add_u32 s21, s62, {WS_OB}")
    for k in range(8):
        if k == 4: i("s_add_u32 s21, s21, 4096")
        i(f"buffer_load_dwordx4 {vr(OF+4*k,4)}, v1, s[16:19], s21 offen offset:{(k%4)*1024} {SC}")
    ACC4 = 32
    WF4 = 64
    def wreads():
        for k in range(8):
            for ft in range(2):
                for rd in range(2):
                    i(f"ds_read_b64_tr_b16 {vr(WF4+8*k+4*ft+2*rd,2)}, v{(P4A,P4B)[ft]} offset:{(16*k+8*rd)*128}")
    wreads()
    for n2 in range(8):
        i(f"s_add_u32 m0, s57, {WOA_LDS + n2*8192}")
        i(f"s_mov_b32 s25, {n2*65536}")
        i(f"buffer_load_dwordx4 v29, s[12:15], s25 offen lds")
    i(f"""
    s_lshl_b32 s21, s60, 7
    s_lshl_b32 s22, s50, 2
    s_add_u32 s21, s21, s22
    s_add_u32 s21, s21, {FL_OA}
    s_waitcnt vmcnt(16)
    """)
    flag_store("s21", 30)
    stamp(10)
    srd(a, 24, 36, 37, 0x400000)
    def proj(br):
        i("s_waitcnt lgkmcnt(0)")
        for k in range(8):
            for ft in range(2):
                c = "0" if k == 0 else vr(ACC4+16*ft,16)
                i(f"v_mfma_f32_32x32x16_bf16 {vr(ACC4+16*ft,16)}, {vr(WF4+8*k+4*ft,4)}, {vr(OF+4*k,4)}, {c}")
        if br == 1:
            i("s_barrier")
        i("s_nop 15")
        for ft in range(2):
            for q in range(4):
                i(f"ds_write_b128 v{P4W}, {vr(ACC4+16*ft+4*q,4)} offset:{ft*4096+q*1024}")
        i("s_waitcnt lgkmcnt(0)\ns_barrier")
        for kq in range(4):
            for q in range(2):
                i(f"ds_read_b128 {vr(ACC4+8*kq+4*q,4)}, v{P4R} offset:{kq*16384+q*1024}")
        i("s_waitcnt lgkmcnt(0)")
        for k in range(8):
            i(f"v_add_f32 v{ACC4+k}, v{ACC4+k}, v{ACC4+8+k}")
            i(f"v_add_f32 v{ACC4+16+k}, v{ACC4+16+k}, v{ACC4+24+k}")
        for k in range(8):
            i(f"v_add_f32 v{ACC4+k}, v{ACC4+k}, v{ACC4+16+k}")
        for k in range(4):
            i(f"v_cvt_pk_bf16_f32 v{12+k}, v{ACC4+2*k}, v{ACC4+2*k+1}")
        i(f"s_add_u32 s21, s63, {br*1024}")
        i(f"buffer_store_dwordx4 v[12:15], v{P4O}, s[24:27], s21 offen")
    i("s_waitcnt vmcnt(9)")
    proj(1)
    stamp(11)
    i(f"""
    s_cmp_eq_u32 s20, 0
    s_cbranch_scc0 F_NPOA
    s_lshl_b32 s22, s52, 8
    s_add_u32 s22, s22, {FL_OA}
    """)
    poll("s22", 30)
    i("F_NPOA:")
    i("s_waitcnt vmcnt(0)\ns_barrier")
    stamp(12)
    i(f"s_add_u32 s21, s62, {WS_OA}")
    for k in range(8):
        if k == 4: i("s_add_u32 s21, s21, 4096")
        i(f"buffer_load_dwordx4 {vr(OF+4*k,4)}, v1, s[16:19], s21 offen offset:{(k%4)*1024} {SC}")
    i(f"v_add_u32 v{P4A}, {WOA_LDS}, v{P4A}\nv_add_u32 v{P4B}, {WOA_LDS}, v{P4B}")
    wreads()
    i("s_waitcnt vmcnt(0)")
    proj(0)
    stamp(13); stamp(14, real=True)
    if STAMP:
        i(f"""
        s_mov_b32 s24, s32
        s_and_b32 s25, s33, 0xffff
        s_mov_b32 s26, 0x4000000
        s_mov_b32 s27, 0x00020000
        s_lshl_b32 s21, s2, 3
        s_add_u32 s21, s21, s20
        s_lshl_b32 s21, s21, 6
        s_add_u32 s21, s21, {STAMP_OFF}
        s_waitcnt lgkmcnt(0)
        s_mov_b64 exec, 1
        """)
        for k in range(16):
            i(f"v_mov_b32 v2, s{64+2*k}\nv_mov_b32 v3, {4*k}\nbuffer_store_dword v2, v3, s[24:27], s21 offen")
        i("s_mov_b64 exec, -1")
    i("s_endpgm")
    i(f"""
    F_FALLBACK:
    s_lshl_b32 s21, s50, 16
    s_lshl_b32 s22, s60, 10
    s_add_u32 s22, s22, s21
    s_add_u32 s22, s22, {WS_QA}
    buffer_load_dwordx4 {vr(QA,4)}, v1, s[16:19], s22 offen {SC}
    s_add_u32 s23, s21, {WS_KA}
    s_add_u32 s24, s21, {WS_VA2}
    v_mov_b32 v26, 0xff800000
    s_mov_b32 s22, 0
    F_FB1:
    s_lshl_b32 s21, s22, 10
    s_add_u32 s21, s21, s23
    buffer_load_dwordx4 {vr(KF,4)}, v1, s[16:19], s21 offen {SC}
    s_waitcnt vmcnt(0)
    {qk(SX, QA, 0)}
    s_nop 15
    """)
    tree_max(range(SX, SX+16), 27, 28)
    i(f"""
    v_max_f32 v26, v26, v27
    s_add_u32 s22, s22, 1
    s_cmp_lt_u32 s22, 64
    s_cbranch_scc1 F_FB1
    """)
    xhalf_max(26, 27)
    i("v_sub_f32 v26, 0, v26")
    for k in range(16):
        i(f"v_mov_b32 v{CA+k}, v26")
        i(f"v_mov_b32 v{OA+k}, 0")
    i(f"""
    s_mov_b32 s22, 0
    F_FB2:
    s_lshl_b32 s21, s22, 10
    s_add_u32 s25, s21, s23
    buffer_load_dwordx4 {vr(KF,4)}, v1, s[16:19], s25 offen {SC}
    s_add_u32 s25, s21, s24
    s_mov_b64 exec, s[54:55]
    buffer_load_dwordx4 {vr(VA,4)}, v25, s[16:19], s25 offen {SC}
    buffer_load_dwordx4 {vr(VB,4)}, v25, s[16:19], s25 offen offset:512 {SC}
    s_mov_b64 exec, -1
    s_waitcnt vmcnt(0)
    {qk(SX, QA, vr(CA,16))}
    s_nop 15
    """)
    for k in range(16):
        i(f"v_exp_f32 v{SX+k}, v{SX+k}")
    i(f"""
    s_nop 1
    {smf(OA, VA, SX)}
    {smf(OA, VB, SX+8)}
    s_add_u32 s22, s22, 1
    s_cmp_lt_u32 s22, 64
    s_cbranch_scc1 F_FB2
    s_nop 15
    s_branch F_FB_RET
    F_DONE:
    s_endpgm
    """)
    return kernel_desc(name, 256, sgpr=100)
```
